```python
import torch

def _softmax(x, axis=-1):
    return torch.softmax(x, dim=axis)

def _gelu(x):
    return torch.nn.functional.gelu(x, approximate='tanh')

def _silu(x):
    return torch.nn.functional.silu(x)

def _sigmoid(x):
    return torch.sigmoid(x)

def _layernorm(x, axis=-1, eps=1e-05):
    m = x.mean(dim=axis, keepdim=True)
    v = x.var(dim=axis, keepdim=True, unbiased=False)
    return (x - m) / torch.sqrt(v + eps)

def _scatter_add(tgt, idx, src, axis=0):
    return tgt.clone().index_add_(axis, idx, src)

def _segment_sum(src, seg, n):
    out = torch.zeros((n,) + src.shape[1:], dtype=src.dtype)
    return out.index_add_(0, seg, src)

def _pad(x, pw):
    flat = tuple((v for pair in reversed(pw) for v in pair))
    return torch.nn.functional.pad(x, flat)
kernel_name = 'adaLN_cond__gqa_block_cached__dense_activation_squared_relu__decode'

def setup_inputs():

    _w = lambda a: (lambda t: t.to(torch.bfloat16) if t.is_floating_point() else t)(torch.as_tensor(a))

    def _A_setup():
        B, Sq, D = (2, 1, 576)
        Hq, Hkv, Sk, Dh = (32, 16, 8192, 128)
        assert Hq % Hkv == 0, (Hq, Hkv)
        return {'x': _w((lambda *s: torch.randn(*s, dtype=torch.bfloat16) * 0.05)(B, Sq, D)), 'k_cache': _w((lambda *s: torch.randn(*s, dtype=torch.bfloat16) * 3.2)(B, Hkv, Sk, Dh)), 'v_cache': _w((lambda *s: torch.randn(*s, dtype=torch.bfloat16) * 0.4)(B, Hkv, Sk, Dh)), 'wq': _w((lambda *s: torch.randn(*s, dtype=torch.bfloat16) * 3.2)(D, Hq * Dh) * D ** (-0.5)), 'wo': _w((lambda *s: torch.randn(*s, dtype=torch.bfloat16) * 0.4)(Hq * Dh, D) * (Hq * Dh) ** (-0.5))}
    _A_in = _A_setup()

    def _B_setup():
        B, S, D, F = (2, 1, 576, 4608)
        return {'x': _w((lambda *s: torch.randn(*s, dtype=torch.bfloat16) * 0.05)(B, S, D)), 'w1': _w((lambda *s: torch.randn(*s, dtype=torch.bfloat16) * 0.05)(D, F)), 'b1': _w((lambda *s: torch.randn(*s, dtype=torch.bfloat16) * 0.4)(F)), 'w2': _w((lambda *s: torch.randn(*s, dtype=torch.bfloat16) * 0.05)(F, D)), 'b2': _w((lambda *s: torch.randn(*s, dtype=torch.bfloat16) * 3.2)(D))}
    _B_in = _B_setup()
    return {'A_x': _A_in['x'], 'A_k_cache': _A_in['k_cache'], 'A_v_cache': _A_in['v_cache'], 'A_wq': _A_in['wq'], 'A_wo': _A_in['wo'], 'B_x': _B_in['x'], 'B_w1': _B_in['w1'], 'B_b1': _B_in['b1'], 'B_w2': _B_in['w2'], 'B_b2': _B_in['b2'], 'c': _w((lambda *s: torch.randn(*s, dtype=torch.bfloat16) * 0.1)(2, 576) * 8.0), 'w_mod': _w((lambda *s: torch.randn(*s, dtype=torch.bfloat16) * 0.1)(576, 6 * 576) * 576 ** (-0.5) * 8.0)}

def reference(A_x, A_k_cache, A_v_cache, A_wq, A_wo, B_x, B_w1, B_b1, B_w2, B_b2, c, w_mod):

    def _A_ref(x, k_cache, v_cache, wq, wo):
        B, Sq, D = x.shape
        Hq, Dh = (32, 128)
        Hkv = k_cache.shape[1]
        rep = Hq // Hkv
        q = (lambda x, *d: x.permute(*d))((x @ wq).reshape(B, Sq, Hq, Dh), 0, 2, 1, 3)
        k = (lambda x, n, axis: torch.repeat_interleave(x, n, dim=axis))(k_cache, rep, axis=1)
        v = (lambda x, n, axis: torch.repeat_interleave(x, n, dim=axis))(v_cache, rep, axis=1)
        scores = torch.einsum('bhqd,bhkd->bhqk', q, k) * Dh ** (-0.5)
        p = _softmax(scores, axis=-1)
        o = torch.einsum('bhqk,bhkd->bhqd', p, v)
        return (lambda x, *d: x.permute(*d))(o, 0, 2, 1, 3).reshape(B, Sq, Hq * Dh) @ wo

    def _B_ref(x, w1, b1, w2, b2):
        h = torch.einsum('bsd,df->bsf', x, w1) + b1
        zero = torch.zeros_like(h)
        r = torch.where(h > zero, h, zero)
        h = r * r
        out = torch.einsum('bsf,fd->bsd', h, w2) + b2
        return out
    x = A_x
    mod = (_silu(c) @ w_mod).reshape(c.shape[0], 6, 1, -1)
    sa, ca, ga, sb, cb, gb = (mod[:, 0].clone(), mod[:, 1].clone(), mod[:, 2].clone(), mod[:, 3].clone(), mod[:, 4].clone(), mod[:, 5].clone())
    h = _layernorm(x, axis=-1) * (1 + ca) + sa
    x = x + ga * _A_ref(h, A_k_cache, A_v_cache, A_wq, A_wo)
    h = _layernorm(x, axis=-1) * (1 + cb) + sb
    x = x + gb * _B_ref(h, B_w1, B_b1, B_w2, B_b2)
    return x
```

```python
import re
TRANS = ("v_exp_f32","v_log_f32","v_rcp_f32","v_rsq_f32","v_sqrt_f32","v_sin_f32","v_cos_f32")
def parse_regs(tok):
    tok = tok.strip()
    tok = tok.lstrip('-')
    if tok.startswith('abs(') or tok.startswith('|'):
        tok = tok.replace('abs(','').replace(')','').replace('|','')
    m = re.fullmatch(r'([vs])\[(\d+):(\d+)\]', tok)
    if m: return {(m.group(1), i) for i in range(int(m.group(2)), int(m.group(3))+1)}
    m = re.fullmatch(r'([vs])(\d+)', tok)
    if m: return {(m.group(1), int(m.group(2)))}
    if tok == 'vcc': return {('s',106),('s',107)}
    if tok == 'vcc_lo': return {('s',106)}
    if tok == 'vcc_hi': return {('s',107)}
    if tok == 'm0': return {('s',124)}
    if tok == 'exec': return {('s',126),('s',127)}
    return set()

class Ins:
    def __init__(self, text):
        self.text = text
        t = text.split(';')[0].strip()
        self.label = t.endswith(':')
        self.directive = t.startswith('.')
        self.op = ''
        self.dst=set(); self.src=set(); self.srcC=set(); self.srcAB=set(); self.stdata=set()
        self.kind='other'
        if self.label or self.directive or not t: return
        parts = t.split(None,1)
        op = parts[0]; self.op = op
        rest = parts[1] if len(parts)>1 else ''
        ops = [o.strip() for o in rest.split(',')] if rest else []
        fixed=[]; depth=0; cur=''
        for ch in rest:
            if ch=='[': depth+=1
            if ch==']': depth-=1
            if ch==',' and depth==0:
                fixed.append(cur.strip()); cur=''
            else: cur+=ch
        if cur.strip(): fixed.append(cur.strip())
        ops=[]
        mods=[]
        for i,o in enumerate(fixed):
            w=o.split()
            ops.append(w[0]); mods+=w[1:]
        self.mods=mods; self.ops=ops
        R=[parse_regs(o) for o in ops]
        self.dpp = op.endswith('_dpp')
        if op.startswith('v_mfma'):
            self.kind='mfma'; self.dst=R[0]; self.srcAB=R[1]|R[2]; self.srcC=R[3]; self.src=self.srcAB|self.srcC
        elif op.startswith('v_cmp'):
            self.kind='valu'; self.dst=R[0]; self.src=set().union(*R[1:])
        elif op.startswith('v_readlane') or op.startswith('v_readfirstlane'):
            self.kind='valu'; self.dst=R[0]; self.src=set().union(*R[1:]); self.rl=True
        elif op.startswith('v_permlane'):
            self.kind='valu'; self.dst=R[0]|R[1]; self.src=R[0]|R[1]; self.perml=True
        elif op.startswith('v_'):
            self.kind='valu'; self.dst=R[0]; self.src=set().union(*R[1:]) if len(R)>1 else set()
            if op.startswith(('v_fmac','v_dot2c','v_writelane')) : self.src|=R[0]
            if op.startswith('v_cndmask') and len(ops)==3: self.src|=parse_regs('vcc')
            if self.dpp: self.src|=R[0]
            if op.startswith(('v_add_co','v_sub_co','v_addc_co')): self.dst|=R[1]
        elif op.startswith('ds_read') or op.startswith('ds_bpermute') or op.startswith('ds_swizzle'):
            self.kind='ds'; self.dst=R[0]; self.src=set().union(*R[1:])
        elif op.startswith('ds_'):
            self.kind='ds'; self.src=set().union(*R)
        elif op.startswith('buffer_load') or op.startswith('global_load'):
            self.kind='vmem'
            if 'lds' in mods: self.src=set().union(*R)|parse_regs('m0'); self.dma=True
            else: self.dst=R[0]; self.src=set().union(*R[1:])
        elif op.startswith('buffer_store') or op.startswith('global_store') or op.startswith('buffer_atomic'):
            self.kind='vmem'; self.src=set().union(*R)
            if 'x4' in op or 'x3' in op: self.stdata = R[0] if op.startswith('buffer') else R[1]
        elif op.startswith('s_'):
            self.kind='salu'
            if op.startswith(('s_cmp','s_cbranch','s_branch','s_waitcnt','s_nop','s_barrier','s_sleep','s_endpgm','s_bitcmp','s_setprio')):
                self.src=set().union(*R) if R else set()
            else:
                self.dst=R[0] if R else set(); self.src=set().union(*R[1:]) if len(R)>1 else set()
                if 'saveexec' in op: self.dst|=parse_regs('exec')
        self.trans = op.replace('_e32','').replace('_e64','') in TRANS
    def ws(self):
        if self.label or self.directive or not self.op: return 0
        if self.op=='s_nop': return int(self.ops[0],0)+1
        return 1

def need(p, c):
    n=0
    pv={r for r in p.dst if r[0]=='v'}; ps={r for r in p.dst if r[0]=='s'}
    if p.kind=='valu':
        if c.kind=='mfma' and pv & c.src: n=max(n,2)
        if c.kind=='valu':
            if getattr(c,'dpp',False) and pv & c.src: n=max(n,2)
            if getattr(c,'perml',False) and pv & c.src: n=max(n,2)
            if getattr(c,'rl',False) and pv & c.src: n=max(n,1)
            if ps & c.src: n=max(n, 4 if getattr(c,'rl',False) else 2)
        if p.trans and pv & c.src and c.kind in('valu','ds','vmem','mfma'): n=max(n,1)
        if c.kind=='vmem' and ps & c.src: n=max(n,5)
        if c.kind=='salu' and ps & c.src: n=max(n,1)
    if p.kind=='mfma':
        if c.kind=='mfma':
            if pv & c.srcAB: n=max(n,8)
            if pv & c.srcC and not (c.srcC==p.dst and c.op==p.op): n=max(n,6)
            if pv & c.dst and not (c.srcC==p.dst and c.op==p.op): n=max(n,6)
        elif c.kind in('valu','ds','vmem'):
            if pv & (c.src|c.dst): n=max(n,8)
        if c.kind=='valu' and p.srcC & c.dst: n=max(n,3)
    if p.kind=='salu':
        if getattr(c,'dma',False) and ('s',124) in p.dst: n=max(n,1)
    if p.kind=='vmem' and p.stdata:
        if c.kind in ('valu','mfma') and p.stdata & c.dst: n=max(n,2)
        elif p.stdata & c.dst: n=max(n,1)
    return n

def fix_hazards(lines):
    ins=[Ins(l) for l in lines]
    br={}
    raw=[]
    for c in ins:
        if c.op:
            raw.append(c)
            if c.op.startswith('s_cbranch') or c.op=='s_branch':
                br.setdefault(c.ops[0],[]).append(raw[-12:])
    out=[]; hists=[[]]; nins=0
    for ln,c in zip(lines,ins):
        if c.label:
            name=ln.split(';')[0].strip()[:-1]
            for h in br.get(name,[]): hists.append(list(h))
        if c.op:
            req=0
            for hist in hists:
                dist=0
                for p in reversed(hist):
                    k=need(p,c)
                    if k>dist: req=max(req,k-dist)
                    dist+=p.ws()
                    if dist>=8: break
            while req>0:
                k=min(req,16)
                nop=Ins(f"s_nop {k-1}"); out.append(f"s_nop {k-1}")
                for hist in hists: hist.append(nop)
                req-=k; nins+=1
            for hist in hists: hist.append(c)
            if c.op in('s_branch','s_endpgm'): hists=[[]]
            nh=[]
            for hist in hists:
                h=hist[-12:]
                if not any(len(o)==len(h) and all(a is b for a,b in zip(o,h)) for o in nh): nh.append(h)
            hists=nh
        out.append(ln)
    return out, nins
```

```python
import sys
from asmlib import fix_hazards
KN = "adaLN_cond__gqa_block_cached__dense_activation_squared_relu__decode"

WS_EPOCH=0; WS_XCC=0x100; WS_MOD=0x1000; WS_Q=0x8000; WS_ML=0x10000; WS_X1=0x12000
WS_E2A=0x20000; WS_E3=0x70000; WS_E1=0xC0000; WS_STAMP=0x200000; WS_SIZE=0x400000
OOB=0x80000000
POLL_MAX=1<<18

class G:
    def __init__(s, cfg):
        s.L=[]; s.cfg=cfg; s.vm=0; s.lab=0
    def e(s, x): s.L.append(x)
    def label(s, p="L"):
        s.lab+=1; return f"{p}_{s.lab}"
    def vissue(s, txt, counted=True):
        s.e(txt)
        if counted:
            s.vm+=1; return s.vm
        return None
    def vwait(s, tok):
        n=s.vm-tok
        assert 0<=n<=63, n
        s.e(f"s_waitcnt vmcnt({n})")
    def srd(s, d, ptr, nbytes):
        s.e(f"s_mov_b32 s{d}, s{ptr}"); s.e(f"s_mov_b32 s{d+1}, s{ptr+1}")
        s.e(f"s_mov_b32 s{d+2}, {nbytes}"); s.e(f"s_mov_b32 s{d+3}, 0x20000")
    def stamp(s, idx):
        if not s.cfg.get('stamp'): return
        s.e("s_memrealtime s[70:71]"); s.e("s_waitcnt lgkmcnt(0)")
        s.e(f"v_mov_b32 v{s.stv}, s70")
        s.e(f"buffer_store_dword v{s.stv}, v{s.stv+1}, s[4:7], 0 offen offset:{idx*4}")
    def r2(s, a, b, t):
        s.e(f"v_cvt_pk_bf16_f32 v{t}, v{a}, v{b}")
        s.e(f"v_lshlrev_b32 v{a}, 16, v{t}")
        s.e(f"v_and_b32 v{b}, 0xffff0000, v{t}")
    def r1(s, a):
        s.e(f"v_cvt_pk_bf16_f32 v{a}, v{a}, v{a}")
        s.e(f"v_and_b32 v{a}, 0xffff0000, v{a}")

S_X,S_K,S_V,S_WQ,S_WO,S_W1,S_B1,S_W2,S_B2,S_C,S_WM,S_OUT,S_DBG,S_WS = 32,34,36,38,40,44,46,48,50,52,54,56,58,60
S_W=62; S_R=63; S_J=64; S_EP=65; S_TAG=66; S_CNT=67; S_FAST=68
DPP="row_mask:0xf bank_mask:0xf"

def prologue(g):
    e=g.e
    e("s_cmp_ge_u32 s2, 256"); e("s_cbranch_scc1 L_end")
    e("s_load_dwordx16 s[32:47], s[0:1], 0")
    e("s_load_dwordx8 s[48:55], s[0:1], 64")
    e("s_load_dwordx4 s[56:59], s[0:1], 96")
    e("s_load_dwordx2 s[60:61], s[0:1], 112")
    e("v_and_b32 v1, 63, v0")
    e("v_lshrrev_b32 v2, 6, v0")
    e(f"s_lshr_b32 s{S_R}, s2, 3"); e(f"s_and_b32 s{S_J}, s2, 7")
    e(f"v_readfirstlane_b32 s{S_W}, v2")
    e(f"s_cmp_eq_u32 s{S_J}, 0"); e("s_cbranch_scc1 L_tail")

def ws_setup(g):
    e=g.e
    e(f"s_load_dword s{S_EP}, s[{S_WS}:{S_WS+1}], {WS_EPOCH}")
    g.srd(4, S_WS, WS_SIZE)

def stamp_setup(g, v):
    g.stv=v
    if not g.cfg.get('stamp'): return
    e=g.e
    e("s_lshl_b32 s70, s2, 3"); e(f"s_add_u32 s70, s70, s{S_W}"); e("s_lshl_b32 s70, s70, 6"); e(f"s_add_u32 s70, s70, {WS_STAMP}")
    e(f"v_mov_b32 v{v+1}, s70"); e(f"v_mov_b32 v{v}, {OOB}")
    e("v_cmp_eq_u32 vcc, 0, v1"); e(f"v_cndmask_b32 v{v+1}, v{v}, v{v+1}, vcc")

def stream(g):
    e=g.e; cfg=g.cfg
    KF=cfg.get('kvflags','nt'); D=cfg.get('depth',6); DV=cfg.get('depthv',17)
    NG=37; NE=16 if cfg.get('stamp') else 17
    KR=16; VE=164; QF=232; DS=236; ACC=252
    QB=0; MAXB=512; LB=576; RED=1024
    def kreg(i): return KR+4*i
    def vreg(i): return VE+4*i if i<NE else kreg(i-NE+10)
    def preg(i): return KR+i
    e("v_lshrrev_b32 v6, 4, v1"); e("v_bfe_u32 v7, v1, 2, 2"); e("v_and_b32 v8, 3, v1")
    e("v_lshlrev_b32 v6, 6, v6"); e("v_lshlrev_b32 v7, 8, v7"); e("v_lshlrev_b32 v8, 4, v8")
    e("v_add3_u32 v2, v6, v7, v8")
    e("v_lshlrev_b32 v3, 4, v1")
    e(f"s_sub_u32 s{S_J}, s{S_J}, 1")
    e(f"s_lshl_b32 s16, s{S_J}, 3"); e(f"s_add_u32 s16, s16, s{S_W}")
    e("s_mul_i32 s17, s16, 36"); e("s_min_u32 s18, s16, 32"); e("s_add_u32 s17, s17, s18")
    e("s_cmp_lt_u32 s16, 32")
    e(f"s_cselect_b32 s19, 0, {OOB}")
    e("s_or_b32 s18, s19, 0x7f800000")
    e("s_lshl_b32 s17, s17, 10"); e(f"s_lshl_b32 s16, s{S_R}, 21"); e("s_add_u32 s16, s16, s17")
    e("v_or_b32 v4, s19, v2"); e("v_or_b32 v5, s19, v3")
    e("s_waitcnt lgkmcnt(0)")
    g.srd(8,S_K,0x4000000); g.srd(12,S_V,0x4000000)
    ws_setup(g)
    ktok=[]; vtok=[None]*NG
    def kload(i):
        if i%4==0: e(f"s_add_u32 s17, s16, {i*1024}")
        off = 4 if i==NG-1 else 2
        ktok.append(g.vissue(f"buffer_load_dwordx4 v[{kreg(i)}:{kreg(i)+3}], v{off}, s[8:11], s17 offen offset:{(i%4)*1024} {KF}"))
    def vload(i):
        e(f"s_add_u32 s17, s16, {(i//4)*4096}")
        off = 5 if i==NG-1 else 3
        vtok[i]=g.vissue(f"buffer_load_dwordx4 v[{vreg(i)}:{vreg(i)+3}], v{off}, s[12:15], s17 offen offset:{(i%4)*1024} {KF}")
    for i in range(NG):
        kload(i)
        if i==D-1:
            stamp_setup(g, 228)
            g.stamp(0)
            e("s_waitcnt lgkmcnt(0)")
            e(f"s_add_u32 s{S_TAG}, s{S_EP}, 1")
            e("v_and_b32 v6, 1, v1"); e("v_mov_b32 v7, 0xffff"); e("v_lshlrev_b32 v6, 4, v6"); e("v_lshlrev_b32 v7, v6, v7")
            e("v_bfe_u32 v6, v1, 1, 2")
            for k in range(4):
                e(f"v_cmp_eq_u32 vcc, {k}, v6"); e(f"v_cndmask_b32 v{10+k}, 0, v7, vcc")
            e("s_mov_b32 s19, 0x3db504f3")
            e("s_mov_b32 s20, 0x3fb8aa3b")
            e(f"s_and_b32 s21, s{S_R}, 15"); e("s_lshl_b32 s21, s21, 11"); e(f"s_add_u32 s21, s21, {WS_Q}")
            e(f"s_cmp_lt_u32 s{S_R}, 16"); e("s_cselect_b32 s24, 0, 0x02020202"); e("s_add_u32 s24, s24, 0x05040100")
            e("v_mov_b32 v8, 0xff800000"); e("v_mov_b32 v9, 0")
            for k in range(4): e(f"v_mov_b32 v{ACC+k}, 0")
        if i>=D-1: e(f"s_waitcnt vmcnt({D-1})")
    e(f"s_cmp_lg_u32 s{S_W}, 0"); e("s_cbranch_scc1 L_s_nopoll")
    g.vissue(f"buffer_load_dwordx4 v[{DS}:{DS+3}], v3, s[4:7], s21 offen sc1", False)
    g.vissue(f"buffer_load_dwordx4 v[{DS+4}:{DS+7}], v3, s[4:7], s21 offen offset:1024 sc1", False)
    e("L_s_nopoll:")
    ptok=g.vm
    for i in range(NE):
        vload(i)
        if i>=DV-1 and i<NE-1: e(f"s_waitcnt vmcnt({DV-1})")
    g.vwait(ptok)
    g.stamp(1)
    e(f"s_cmp_lg_u32 s{S_W}, 0"); e("s_cbranch_scc1 L_s_qdone")
    e(f"s_mov_b32 s{S_CNT}, 0")
    e("L_s_qchk:")
    e(f"v_cmp_ne_u32 vcc, s{S_TAG}, v{DS+1}"); e(f"v_cmp_ne_u32 s[22:23], s{S_TAG}, v{DS+3}"); e("s_or_b64 vcc, vcc, s[22:23]")
    e(f"v_cmp_ne_u32 s[22:23], s{S_TAG}, v{DS+5}"); e("s_or_b64 vcc, vcc, s[22:23]")
    e(f"v_cmp_ne_u32 s[22:23], s{S_TAG}, v{DS+7}"); e("s_or_b64 vcc, vcc, s[22:23]")
    e("s_cbranch_vccz L_s_qok")
    e(f"s_add_u32 s{S_CNT}, s{S_CNT}, 1"); e(f"s_cmp_gt_u32 s{S_CNT}, {POLL_MAX}"); e("s_cbranch_scc1 L_s_qok")
    e("s_sleep 2")
    g.vissue(f"buffer_load_dwordx4 v[{DS}:{DS+3}], v3, s[4:7], s21 offen sc1", False)
    g.vissue(f"buffer_load_dwordx4 v[{DS+4}:{DS+7}], v3, s[4:7], s21 offen offset:1024 sc1", False)
    e("s_waitcnt vmcnt(0)"); e("s_branch L_s_qchk")
    e("L_s_qok:")
    e(f"v_perm_b32 v6, v{DS+2}, v{DS}, s24"); e(f"v_perm_b32 v7, v{DS+6}, v{DS+4}, s24")
    e("v_lshlrev_b32 v14, 2, v1")
    e(f"ds_write_b32 v14, v6 offset:{QB}"); e(f"ds_write_b32 v14, v7 offset:{QB+256}")
    e("s_waitcnt lgkmcnt(0)")
    e("L_s_qdone:")
    e("v_bfe_u32 v6, v1, 3, 1"); e("v_lshlrev_b32 v6, 8, v6"); e("v_lshrrev_b32 v7, 4, v1"); e("v_lshl_add_u32 v6, v7, 6, v6")
    e("v_and_b32 v7, 3, v1"); e("v_lshl_add_u32 v6, v7, 4, v6")
    e("s_barrier")
    e(f"ds_read_b128 v[{QF}:{QF+3}], v6 offset:{QB}")
    e("s_waitcnt lgkmcnt(0)")
    g.stamp(2)
    def mf(i):
        d=DS+4*(i%4)
        e(f"v_mfma_f32_16x16x32_bf16 v[{d}:{d+3}], v[{kreg(i)}:{kreg(i)+3}], v[{QF}:{QF+3}], 0")
        if 10<=i<10+NG-NE: vload(i-10+NE)
    def rnd_ops(a,b,ta,tb):
        o=[]
        o.append(f"v_cvt_pk_bf16_f32 v2, v{ta}, v{tb}")
        o.append(f"v_lshlrev_b32 v{ta}, 16, v2"); o.append(f"v_and_b32 v{tb}, 0xffff0000, v2")
        o.append(f"v_mul_f32 v{ta}, s19, v{ta}")
        if b is not None: o.append(f"v_mul_f32 v{tb}, s19, v{tb}")
        o.append(f"v_cvt_pk_bf16_f32 v2, v{ta}, v{tb}")
        o.append(f"v_lshlrev_b32 v{preg(a)}, 16, v2")
        if b is not None:
            o.append(f"v_and_b32 v{preg(b)}, 0xffff0000, v2")
            o.append(f"v_max3_f32 v8, v8, v{preg(a)}, v{preg(b)}")
        else:
            o.append(f"v_min_f32 v{preg(a)}, s18, v{preg(a)}")
            o.append(f"v_max_f32 v8, v8, v{preg(a)}")
        return o
    mf(0); mf(1)
    prev=[]
    nb=(NG+1)//2
    for n in range(nb):
        a=2*n; b=2*n+1 if 2*n+1<NG else None
        if a+2<NG: mf(a+2)
        if a+3<NG: mf(a+3)
        ta,tb=(6,7) if n%2==0 else (14,15)
        da=DS+4*(a%4); db=DS+4*((a+1)%4)
        dp=[]
        for u in range(4):
            qp=f"quad_perm:[{u},{u},{u},{u}] {DPP}"
            if u==0:
                dp.append(f"v_mov_b32_dpp v{ta}, v{da} {qp}")
                if b is not None: dp.append(f"v_mov_b32_dpp v{tb}, v{db} {qp}")
            else:
                dp.append(f"v_add_f32_dpp v{ta}, v{da+u}, v{ta} {qp}")
                if b is not None: dp.append(f"v_add_f32_dpp v{tb}, v{db+u}, v{tb} {qp}")
        pi=0
        step=2 if b is not None else 1
        for k in range(0,len(dp),step):
            for x in dp[k:k+step]: e(x)
            for x in prev[pi:pi+2]: e(x)
            pi+=2
        for x in prev[pi:]: e(x)
        prev=rnd_ops(a,b,ta,tb if b is not None else ta)
    for x in prev: e(x)
    e("v_mov_b32 v6, v8"); e("v_permlane16_swap_b32 v8, v6"); e("v_max_f32 v8, v8, v6")
    e("v_mov_b32 v6, v8"); e("v_permlane32_swap_b32 v8, v6"); e("v_max_f32 v8, v8, v6")
    e("v_bfe_u32 v6, v1, 3, 1"); e("v_lshlrev_b32 v6, 5, v6")
    e(f"s_lshl_b32 s22, s{S_W}, 2"); e("v_add_u32 v7, s22, v6")
    e(f"ds_write_b32 v7, v8 offset:{MAXB}")
    e("s_waitcnt lgkmcnt(0)"); e("s_barrier")
    e(f"ds_read_b128 v[{DS}:{DS+3}], v6 offset:{MAXB}"); e(f"ds_read_b128 v[{DS+4}:{DS+7}], v6 offset:{MAXB+16}")
    e("s_waitcnt lgkmcnt(0)")
    e(f"v_max3_f32 v8, v{DS}, v{DS+1}, v{DS+2}"); e(f"v_max3_f32 v14, v{DS+3}, v{DS+4}, v{DS+5}")
    e(f"v_max3_f32 v8, v8, v{DS+6}, v{DS+7}"); e("v_max_f32 v8, v8, v14")
    e("v_mul_f32 v14, s20, v8")
    for i in range(NG):
        e(f"v_fma_f32 v{preg(i)}, v{preg(i)}, s20, -v14")
    for i in range(NG):
        e(f"v_exp_f32 v{preg(i)}, v{preg(i)}")
        if i>=1:
            e(f"v_add_f32 v9, v9, v{preg(i-1)}"); e(f"v_cvt_pk_bf16_f32 v{preg(i-1)}, v{preg(i-1)}, v{preg(i-1)}")
    e(f"v_add_f32 v9, v9, v{preg(NG-1)}"); e(f"v_cvt_pk_bf16_f32 v{preg(NG-1)}, v{preg(NG-1)}, v{preg(NG-1)}")
    e("v_mov_b32 v15, v9"); e("v_permlane16_swap_b32 v9, v15"); e("v_add_f32 v9, v9, v15")
    e("v_mov_b32 v15, v9"); e("v_permlane32_swap_b32 v9, v15"); e("v_add_f32 v9, v9, v15")
    e(f"ds_write_b32 v7, v9 offset:{LB}")
    e("v_lshrrev_b32 v2, 5, v1"); e("v_lshlrev_b32 v2, 9, v2"); e("v_and_b32 v4, 15, v1"); e("v_lshl_add_u32 v2, v4, 5, v2")
    e("v_bfe_u32 v4, v1, 4, 1"); e("v_lshl_add_u32 v2, v4, 4, v2"); e(f"s_lshl_b32 s22, s{S_W}, 10"); e("v_add_u32 v2, s22, v2")
    e(f"s_lshl_b32 s22, s{S_W}, 9"); e("v_lshlrev_b32 v4, 3, v1"); e("v_add_u32 v4, s22, v4")
    e(f"s_lshl_b32 s25, s{S_R}, 1"); e(f"s_add_u32 s25, s25, s{S_W}"); e("s_lshl_b32 s25, s25, 3"); e(f"s_add_u32 s25, s25, s{S_J}")
    e("s_lshl_b32 s25, s25, 10"); e(f"s_add_u32 s25, s25, {WS_E1}")
    def abuild(i):
        a=DS+4*(i%2)
        for k in range(4): e(f"v_and_b32 v{a+k}, v{preg(i)}, v{10+k}")
    g.stamp(3)
    abuild(0)
    for i in range(NG):
        if i+1<NG: abuild(i+1)
        g.vwait(vtok[i])
        a=DS+4*(i%2)
        e(f"v_mfma_f32_16x16x32_bf16 v[{ACC}:{ACC+3}], v[{a}:{a+3}], v[{vreg(i)}:{vreg(i)+3}], v[{ACC}:{ACC+3}]")
        if i==4:
            e("s_waitcnt lgkmcnt(0)"); e("s_barrier")
            e(f"s_cmp_lg_u32 s{S_W}, 0"); e("s_cbranch_scc1 L_s_noml")
            t=DS+8
            e(f"ds_read_b128 v[{t}:{t+3}], v6 offset:{LB}"); e(f"ds_read_b128 v[{t+4}:{t+7}], v6 offset:{LB+16}")
            e(f"s_lshl_b32 s22, s{S_R}, 8"); e(f"s_lshl_b32 s23, s{S_J}, 4"); e("s_add_u32 s22, s22, s23"); e(f"s_add_u32 s22, s22, {WS_ML}")
            e("v_lshlrev_b32 v14, 2, v6")
            e("v_and_b32 v15, 0x37, v1"); e("v_cmp_eq_u32 vcc, 0, v15"); e(f"v_mov_b32 v15, {OOB}"); e("v_cndmask_b32 v14, v15, v14, vcc")
            e("s_waitcnt lgkmcnt(0)")
            e(f"v_add_f32 v{t}, v{t}, v{t+1}"); e(f"v_add_f32 v{t+2}, v{t+2}, v{t+3}"); e(f"v_add_f32 v{t+4}, v{t+4}, v{t+5}"); e(f"v_add_f32 v{t+6}, v{t+6}, v{t+7}")
            e(f"v_add_f32 v{t}, v{t}, v{t+2}"); e(f"v_add_f32 v{t+4}, v{t+4}, v{t+6}"); e(f"v_add_f32 v{t+2}, v{t}, v{t+4}")
            e(f"v_mov_b32 v{t}, v8"); e(f"v_mov_b32 v{t+1}, s{S_TAG}"); e(f"v_mov_b32 v{t+3}, s{S_TAG}")
            g.vissue(f"buffer_store_dwordx4 v[{t}:{t+3}], v14, s[4:7], s22 offen sc1", False)
            e("L_s_noml:")
    e(f"ds_write_b128 v2, v[{ACC}:{ACC+3}] offset:{RED}")
    g.stamp(4)
    e("s_waitcnt lgkmcnt(0)"); e("s_barrier")
    e(f"s_cmp_gt_u32 s{S_W}, 1"); e("s_cbranch_scc1 L_end")
    t=KR
    for w in range(8): e(f"ds_read_b64 v[{t+2*w}:{t+2*w+1}], v4 offset:{RED+w*1024}")
    e(f"v_mov_b32 v{DS+1}, s{S_TAG}"); e(f"v_mov_b32 v{DS+3}, s{S_TAG}")
    e("s_waitcnt lgkmcnt(0)")
    for st in (2,4):
        for w in range(0,16,2*st):
            e(f"v_add_f32 v{t+w}, v{t+w}, v{t+w+st}"); e(f"v_add_f32 v{t+w+1}, v{t+w+1}, v{t+w+st+1}")
    e(f"v_add_f32 v{DS}, v{t}, v{t+8}"); e(f"v_add_f32 v{DS+2}, v{t+1}, v{t+9}")
    e(f"buffer_store_dwordx4 v[{DS}:{DS+3}], v3, s[4:7], s25 offen sc1")
    g.stamp(5)
    e("s_endpgm")

HA=0; HB=73728; MISC=147456
SCB=0; HBUF=2304; OB=4608; HIDB=5376; W1XP=6144; TRED=6656; STAT=8704
LDS_BYTES=MISC+8832
WO=64; W1=144; W2H=220
def w1x(i): return 128+4*i if i<4 else 216

def tail(g):
    e=g.e; cfg=g.cfg
    WF=cfg.get('wflags','nt'); W1F=cfg.get('w1flags','')
    g.vm=0
    e("L_tail:")
    e("v_lshrrev_b32 v16, 3, v1"); e("v_bfe_u32 v17, v1, 1, 2"); e("v_lshrrev_b32 v18, 4, v1")
    e("v_sub_u32 v17, v17, v18"); e("v_and_b32 v17, 3, v17"); e("v_lshlrev_b32 v17, 5, v17")
    e("v_and_b32 v18, 1, v1"); e("v_lshl_add_u32 v17, v18, 4, v17")
    e("v_mul_u32_u24 v2, 6912, v16"); e("v_add_u32 v2, v2, v17")
    e("v_lshl_add_u32 v3, v16, 13, v17")
    e("v_mul_u32_u24 v4, 1152, v16"); e("v_add_u32 v4, v4, v17")
    e("s_waitcnt lgkmcnt(0)")
    ws_setup(g)
    def dma(voff, gconst, lconst, flags):
        e(f"s_add_u32 m0, s19, {lconst}")
        e(f"s_add_u32 s17, s18, {gconst}")
        return g.vissue(f"buffer_load_dwordx4 v{voff}, s[8:11], s17 offen {flags} lds")
    def chunk_G(half, second):
        g.srd(8,S_WM,576*3456*2)
        if second:
            e(f"s_cmp_lt_u32 s{S_R}, 10"); e(f"s_cselect_b32 s10, 0, {576*3456*2}")
            e(f"s_add_u32 s18, s{S_R}, 22"); e("s_lshl_b32 s18, s18, 7")
        else:
            e(f"s_lshl_b32 s18, s{S_R}, 7")
        e(f"s_mul_i32 s17, s{S_W}, {8*6912}"); e("s_add_u32 s18, s18, s17")
        e(f"s_lshl_b32 s19, s{S_W}, 10")
        for i in range(9): t=dma(2, i*64*6912, half+i*8192, WF)
        return t
    def chunk_wq(half, hf):
        g.srd(8,S_WQ,576*4096*2)
        e(f"s_and_b32 s17, s{S_W}, 1"); e(f"s_lshr_b32 s19, s{S_W}, 1")
        e(f"s_lshl_b32 s18, s{S_R}, 8"); e("s_lshl_b32 s20, s17, 7"); e("s_add_u32 s18, s18, s20")
        e("s_lshl_b32 s20, s19, 16"); e("s_add_u32 s18, s18, s20")
        e("s_mul_i32 s17, s17, 36"); e("s_add_u32 s19, s19, s17"); e("s_lshl_b32 s19, s19, 10")
        for i in range(9): t=dma(3, hf*288*8192+i*32*8192, half+i*4096, WF)
        return t
    def chunk_1152(half, ptr, nbytes, rows_per_wg, row0):
        g.srd(8,ptr,nbytes)
        e(f"s_mul_i32 s18, s{S_R}, {rows_per_wg*1152}"); e(f"s_mul_i32 s17, s{S_W}, {8*1152}"); e("s_add_u32 s18, s18, s17")
        e(f"s_lshl_b32 s19, s{S_W}, 10")
        for i in range(9): t=dma(4, row0*1152+i*128, half+i*8192, WF)
        return t
    def chunk_w2h(half):
        g.srd(8,S_W2,4608*1152)
        e(f"s_and_b32 s17, s{S_W}, 1"); e(f"s_mul_i32 s17, s17, {8*1152}")
        e(f"s_mul_i32 s18, s{S_R}, {144*1152}"); e("s_add_u32 s18, s18, s17")
        e(f"s_lshr_b32 s17, s{S_W}, 1"); e("s_lshl_b32 s17, s17, 7"); e("s_add_u32 s18, s18, s17")
        e(f"s_lshl_b32 s19, s{S_W}, 10")
        l=g.label()
        e(f"s_cmp_gt_u32 s{S_W}, 1"); e(f"s_cbranch_scc1 {l}")
        e(f"s_add_u32 m0, s19, {half+16384}"); e(f"s_add_u32 s17, s18, {128*1152+1024}")
        g.vissue(f"buffer_load_dwordx4 v4, s[8:11], s17 offen {WF} lds", False)
        e(f"{l}:")
        for i in range(2): t=dma(4, 128*1152+i*512, half+i*8192, WF)
        return t
    def chunk_w1(half, cc):
        g.srd(8,S_W1,576*9216)
        e(f"s_mul_i32 s18, s{S_R}, 288"); e(f"s_mul_i32 s17, s{S_W}, {3*9216}"); e("s_add_u32 s18, s18, s17")
        e(f"s_mul_i32 s19, s{S_W}, 864")
        e("s_mov_b64 exec, s[26:27]")
        for i in range(8): t=dma(5, (192*cc+24*i)*9216, half+i*8*864, W1F)
        e("s_mov_b64 exec, -1")
        return t
    def tr(dst, base, off):
        if off<65536: e(f"ds_read_b64_tr_b16 v[{dst}:{dst+1}], v{base} offset:{off}")
        else: e(f"ds_read_b64_tr_b16 v[{dst}:{dst+1}], v{base+1} offset:{off-65536}")
    def trbase(src, half, sextra=None):
        if sextra: e(f"v_add_u32 v14, {sextra}, v{src}");
        else: e(f"v_mov_b32 v14, v{src}")
        if half: e(f"v_add_u32 v14, {half}, v14")
        e("v_add_u32 v15, 0x10000, v14")
    bar=lambda: e("s_barrier")

    c0=chunk_G(HA, False)
    c1=chunk_wq(HB, 0)
    stamp_setup(g, 254); g.stamp(0)
    e("v_lshlrev_b32 v16, 2, v0")
    e("v_cmp_gt_u32 vcc, 288, v0"); e("s_mov_b64 s[28:29], vcc")
    e(f"v_mov_b32 v17, {OOB}"); e("v_cndmask_b32 v16, v17, v16, s[28:29]")
    g.srd(12,S_C,2304)
    g.vissue("buffer_load_dword v20, v16, s[12:15], 0 offen"); g.vissue("buffer_load_dword v21, v16, s[12:15], 0 offen offset:1152")
    g.srd(12,S_X,2304)
    g.vissue("buffer_load_dword v22, v16, s[12:15], 0 offen"); g.vissue("buffer_load_dword v23, v16, s[12:15], 0 offen offset:1152")
    e("v_lshrrev_b32 v18, 5, v1"); e("v_mul_u32_u24 v18, 1152, v18")
    g.vissue("buffer_load_ushort v24, v18, s[12:15], 0 offen")
    e("v_and_b32 v19, 31, v1"); e(f"s_lshl_b32 s16, s{S_R}, 5"); e("v_add_u32 v19, s16, v19")
    e("v_lshlrev_b32 v25, 1, v19"); e("v_add_u32 v13, v25, v18")
    g.vissue("buffer_load_ushort v230, v13, s[12:15], 0 offen")
    g.srd(12,S_B2,1152)
    g.vissue("buffer_load_ushort v231, v25, s[12:15], 0 offen")
    g.srd(12,S_B1,9216)
    e(f"s_mul_i32 s16, s{S_R}, 288"); e(f"s_lshl_b32 s17, s{S_W}, 5"); e("s_add_u32 s17, s17, s16")
    e("v_and_b32 v25, 15, v1"); e("v_lshlrev_b32 v25, 1, v25")
    g.vissue("buffer_load_ushort v232, v25, s[12:15], s17 offen")
    e("v_lshrrev_b32 v25, 4, v1"); e("v_lshlrev_b32 v25, 3, v25")
    tsm=g.vissue("buffer_load_dwordx2 v[234:235], v25, s[12:15], s16 offen offset:256")
    e("v_mul_u32_u24 v25, 3641, v1"); e("v_lshrrev_b32 v25, 16, v25"); e("v_mul_u32_u24 v26, 18, v25"); e("v_sub_u32 v26, v1, v26")
    e("v_mul_u32_u24 v5, 9216, v25"); e("v_lshl_add_u32 v5, v26, 4, v5")
    e("v_cmp_gt_u32 s[26:27], 54, v1")
    e("v_bfe_u32 v25, v1, 2, 3"); e("v_lshrrev_b32 v26, 1, v25"); e(f"v_add_u32 v26, s{S_W}, v26"); e("v_and_b32 v26, 3, v26")
    e("v_lshlrev_b32 v6, 7, v25"); e("v_lshl_add_u32 v6, v26, 5, v6"); e("v_and_b32 v26, 3, v1"); e("v_lshl_add_u32 v6, v26, 3, v6")
    e("v_lshrrev_b32 v25, 5, v1"); e("v_lshl_add_u32 v6, v25, 10, v6")
    e("v_lshrrev_b32 v25, 2, v1"); e("v_mul_u32_u24 v7, 288, v25"); e("v_lshl_add_u32 v7, v26, 3, v7")
    e("v_bfe_u32 v25, v1, 1, 1"); e("v_lshrrev_b32 v26, 4, v1"); e("v_lshlrev_b32 v26, 4, v26"); e(f"v_add_u32 v26, {MISC}, v26")
    e("v_mul_u32_u24 v8, 1152, v25"); e("v_add_u32 v8, v8, v26")
    e("v_mul_u32_u24 v9, 384, v25"); e("v_add_u32 v9, v9, v26")
    e("v_lshrrev_b32 v25, 4, v0"); e("v_lshlrev_b32 v10, 6, v25")
    e("v_bfe_u32 v25, v0, 1, 2"); e("v_lshl_add_u32 v10, v25, 4, v10")
    e("v_bfe_u32 v25, v0, 3, 1"); e("v_lshl_add_u32 v10, v25, 3, v10")
    e("v_and_b32 v25, 1, v0"); e("v_lshl_add_u32 v10, v25, 2, v10"); e(f"v_add_u32 v10, {MISC}, v10")
    e("v_cmp_gt_u32 vcc, 16, v1"); e("v_lshlrev_b32 v25, 4, v1"); e("v_cndmask_b32 v11, v17, v25, vcc")
    e("v_lshlrev_b32 v25, 3, v1"); e("v_cndmask_b32 v12, v17, v25, vcc")
    e("v_lshlrev_b32 v25, 4, v0"); e("v_cndmask_b32 v236, v17, v25, s[28:29]"); e("v_lshlrev_b32 v237, 4, v1")
    e("s_mov_b32 s30, 0x3fb8aa3b")
    e("s_waitcnt lgkmcnt(0)")
    e(f"s_add_u32 s{S_TAG}, s{S_EP}, 1")
    l=g.label()
    e(f"s_cmp_lg_u32 s{S_W}, 0"); e(f"s_cbranch_scc1 {l}")
    e("s_getreg_b32 s16, hwreg(HW_REG_XCC_ID, 0, 4)")
    e("v_mov_b32 v26, s16"); e(f"v_mov_b32 v27, s{S_TAG}"); e("v_cmp_eq_u32 vcc, 0, v1"); e("v_cndmask_b32 v25, v17, 0, vcc")
    e(f"s_lshl_b32 s16, s{S_R}, 3")
    g.vissue(f"buffer_store_dwordx2 v[26:27], v25, s[4:7], s16 offen offset:{WS_XCC} sc1", False)
    e(f"{l}:")
    g.vwait(tsm)
    for b,src in ((0,20),(1,21)):
        e(f"v_lshlrev_b32 v26, 16, v{src}"); e(f"v_and_b32 v27, 0xffff0000, v{src}")
        for r in (26,27):
            e(f"v_mul_f32 v{r+2}, s30, v{r}"); e(f"v_exp_f32 v{r+2}, -v{r+2}"); e(f"v_add_f32 v{r+2}, 1.0, v{r+2}")
            e(f"v_rcp_f32 v{r+2}, v{r+2}"); e(f"v_mul_f32 v{r}, v{r}, v{r+2}")
        e(f"v_cvt_pk_bf16_f32 v{src}, v26, v27")
    e("s_mov_b64 exec, s[28:29]")
    l=g.label(); e(f"s_cbranch_execz {l}")
    e(f"ds_write_b32 v10, v20 offset:{SCB}"); e(f"ds_write_b32 v10, v21 offset:{SCB+1152}")
    e(f"{l}:"); e("s_mov_b64 exec, -1")
    e("v_lshlrev_b32 v230, 16, v230"); e("v_lshlrev_b32 v231, 16, v231"); e("v_lshlrev_b32 v232, 16, v232")
    def layernorm():
        e("v_readlane_b32 s72, v44, 0"); e("v_readlane_b32 s73, v44, 32")
        e("v_subrev_f32 v46, s72, v40"); e("v_subrev_f32 v47, s72, v41"); e("v_subrev_f32 v48, s73, v42"); e("v_subrev_f32 v49, s73, v43")
        for r in range(46,50): e(f"v_cndmask_b32 v{r}, 0, v{r}, s[28:29]")
        e("v_add_f32 v50, v46, v47"); e("v_add_f32 v51, v48, v49")
        e("v_mul_f32 v52, v46, v46"); e("v_mul_f32 v53, v48, v48"); e("v_fmac_f32 v52, v47, v47"); e("v_fmac_f32 v53, v49, v49")
        e("v_permlane32_swap_b32 v50, v51"); e("v_permlane32_swap_b32 v52, v53")
        e("v_add_f32 v50, v50, v51"); e("v_add_f32 v52, v52, v53")
        e("v_permlane16_swap_b32 v50, v52"); e("v_add_f32 v50, v50, v52")
        for m in ("quad_perm:[1,0,3,2]","quad_perm:[2,3,0,1]","row_half_mirror","row_mirror"):
            e(f"v_add_f32_dpp v50, v50, v50 {m} {DPP}")
        e(f"ds_write_b32 v238, v50 offset:{STAT}")
        e("s_waitcnt lgkmcnt(0)"); bar()
        e(f"ds_read_b128 v[52:55], v239 offset:{STAT}"); e(f"ds_read_b128 v[56:59], v239 offset:{STAT+16}")
        e("s_waitcnt lgkmcnt(0)")
        e("v_add_f32 v52, v52, v53"); e("v_add_f32 v54, v54, v55"); e("v_add_f32 v56, v56, v57"); e("v_add_f32 v58, v58, v59")
        e("v_add_f32 v52, v52, v54"); e("v_add_f32 v56, v56, v58"); e("v_add_f32 v52, v52, v56")
        e("v_mov_b32 v53, v52"); e("v_permlane16_swap_b32 v52, v53")
        e("v_mul_f32 v52, 0x3ae38e39, v52"); e("v_mul_f32 v53, 0x3ae38e39, v53")
        e("v_fma_f32 v53, -v52, v52, v53"); e("v_add_f32 v52, v44, v52")
        e("v_max_f32 v53, 0, v53")
        g.r2(52,53,54)
        e("v_add_f32 v53, 0x3727c5ac, v53"); g.r1(53)
        e("v_sqrt_f32 v53, v53"); g.r1(53)
        e("v_rcp_f32 v53, v53")
        e("v_readlane_b32 s72, v52, 0"); e("v_readlane_b32 s73, v52, 32"); e("v_readlane_b32 s74, v53, 0"); e("v_readlane_b32 s75, v53, 32")
        e("v_subrev_f32 v40, s72, v40"); e("v_subrev_f32 v41, s72, v41"); e("v_subrev_f32 v42, s73, v42"); e("v_subrev_f32 v43, s73, v43")
        g.r2(40,41,46); g.r2(42,43,47)
        e("v_mul_f32 v40, s74, v40"); e("v_mul_f32 v41, s74, v41"); e("v_mul_f32 v42, s75, v42"); e("v_mul_f32 v43, s75, v43")
        g.r2(40,41,46); g.r2(42,43,47)
    def modulate(c1_, s_):
        for k in range(4): e(f"v_mul_f32 v{40+k}, v{40+k}, v{c1_+k}")
        g.r2(40,41,46); g.r2(42,43,47)
        for k in range(4): e(f"v_add_f32 v{40+k}, v{40+k}, v{s_+k}")
        e("v_cvt_pk_bf16_f32 v46, v40, v41"); e("v_cvt_pk_bf16_f32 v47, v42, v43")
        e("s_mov_b64 exec, s[28:29]")
        l=g.label(); e(f"s_cbranch_execz {l}")
        e(f"ds_write_b32 v10, v46 offset:{HBUF}"); e(f"ds_write_b32 v10, v47 offset:{HBUF+1152}")
        e(f"{l}:"); e("s_mov_b64 exec, -1")
    def unpack_cs(gs, gc, c1_, s_):
        e(f"v_lshlrev_b32 v{s_}, 16, v{gs}"); e(f"v_lshlrev_b32 v{s_+1}, 16, v{gs+2}")
        e(f"v_and_b32 v{s_+2}, 0xffff0000, v{gs}"); e(f"v_and_b32 v{s_+3}, 0xffff0000, v{gs+2}")
        e(f"v_lshlrev_b32 v{c1_}, 16, v{gc}"); e(f"v_lshlrev_b32 v{c1_+1}, 16, v{gc+2}")
        e(f"v_and_b32 v{c1_+2}, 0xffff0000, v{gc}"); e(f"v_and_b32 v{c1_+3}, 0xffff0000, v{gc+2}")
        for k in range(4): e(f"v_add_f32 v{c1_+k}, 1.0, v{c1_+k}")
        g.r2(c1_,c1_+1,gs); g.r2(c1_+2,c1_+3,gs)
    def poll(loads, tagregs, mask=None, sleep=None, name="P"):
        l=g.label(name); d=g.label(name+"d")
        e(f"s_mov_b32 s{S_CNT}, 0")
        e(f"{l}:")
        for x in loads: g.vissue(x, False)
        e("s_waitcnt vmcnt(0)")
        for i,r in enumerate(tagregs):
            if i==0: e(f"v_cmp_ne_u32 vcc, s{S_TAG}, v{r}")
            else: e(f"v_cmp_ne_u32 s[22:23], s{S_TAG}, v{r}"); e("s_or_b64 vcc, vcc, s[22:23]")
        if mask: e(f"s_and_b64 vcc, vcc, {mask}")
        e(f"s_cbranch_vccz {d}")
        if sleep: e(f"s_sleep {sleep}")
        e(f"s_add_u32 s{S_CNT}, s{S_CNT}, 1"); e(f"s_cmp_lt_u32 s{S_CNT}, {POLL_MAX}"); e(f"s_cbranch_scc1 {l}")
        e(f"{d}:")
    e("v_lshrrev_b32 v25, 4, v1"); e("v_lshlrev_b32 v25, 5, v25"); e(f"v_add_u32 v239, {MISC}, v25")
    e(f"s_lshl_b32 s16, s{S_W}, 2"); e("v_add_u32 v238, s16, v239")
    e(f"s_mov_b32 s84, {WS_X1}"); e(f"s_mov_b32 s85, {WS_X1+4608}")
    e("v_and_b32 v25, 15, v1"); e("v_cmp_gt_u32 vcc, 16, v1"); e("v_cndmask_b32 v26, 1, 0, vcc")
    e("v_lshl_add_u32 v27, v26, 4, v25"); e("v_lshlrev_b32 v27, 2, v27"); e(f"v_add_u32 v233, {MISC}, v27")
    e("v_mul_u32_u24 v27, 384, v26"); e("v_lshrrev_b32 v26, 2, v25"); e("v_lshl_add_u32 v27, v26, 4, v27")
    e("v_and_b32 v26, 3, v25"); e("v_lshl_add_u32 v27, v26, 1, v27")
    e(f"s_lshr_b32 s16, s{S_W}, 1"); e("s_lshl_b32 s16, s16, 6"); e(f"s_and_b32 s17, s{S_W}, 1"); e("s_lshl_b32 s17, s17, 3"); e("s_add_u32 s16, s16, s17")
    e(f"s_add_u32 s16, s16, {MISC}"); e("v_add_u32 v252, s16, v27")
    e("v_bfe_u32 v25, v1, 1, 1"); e("v_lshlrev_b32 v25, 6, v25"); e("v_lshrrev_b32 v26, 4, v1"); e("v_lshl_add_u32 v25, v26, 4, v25"); e(f"v_add_u32 v253, {MISC}, v25")
    e("v_lshlrev_b32 v40, 16, v22"); e("v_and_b32 v41, 0xffff0000, v22"); e("v_lshlrev_b32 v42, 16, v23"); e("v_and_b32 v43, 0xffff0000, v23")
    e("v_lshlrev_b32 v44, 16, v24")
    layernorm()
    def consume_G(half, second):
        l=g.label()
        e(f"s_cmp_gt_u32 s{S_W}, 3"); e(f"s_cbranch_scc1 {l}")
        if second: e(f"s_cmp_lt_u32 s{S_R}, 10"); e(f"s_cbranch_scc1 {l}")
        trbase(6, half)
        for kb in range(18):
            bs=64+4*(kb%6); as_=96+4*(kb%6)
            tr(bs,14,kb*4096); tr(bs+2,14,kb*4096+2048)
            e(f"ds_read_b128 v[{as_}:{as_+3}], v8 offset:{SCB+kb*64}")
            if kb>=3:
                k=kb-3; e("s_waitcnt lgkmcnt(9)")
                e(f"v_mfma_f32_16x16x32_bf16 v[60:63], v[{96+4*(k%6)}:{99+4*(k%6)}], v[{64+4*(k%6)}:{67+4*(k%6)}], {'0' if k==0 else 'v[60:63]'}")
        for k in range(15,18):
            e(f"s_waitcnt lgkmcnt({3*(17-k)})")
            e(f"v_mfma_f32_16x16x32_bf16 v[60:63], v[{96+4*(k%6)}:{99+4*(k%6)}], v[{64+4*(k%6)}:{67+4*(k%6)}], v[60:63]")
        if second: e(f"s_add_u32 s16, s{S_R}, 22"); e("s_lshl_b32 s16, s16, 9")
        else: e(f"s_lshl_b32 s16, s{S_R}, 9")
        e(f"s_lshl_b32 s17, s{S_W}, 7"); e("s_add_u32 s16, s16, s17"); e(f"s_add_u32 s16, s16, {WS_MOD}")
        e("v_cvt_pk_bf16_f32 v60, v60, v62"); e(f"v_mov_b32 v61, s{S_TAG}")
        g.vissue("buffer_store_dwordx2 v[60:61], v12, s[4:7], s16 offen sc1", False)
        e(f"{l}:")
    g.vwait(c0); bar()
    g.stamp(1)
    consume_G(HA, False)
    e("s_waitcnt lgkmcnt(0)"); bar()
    c2=chunk_wq(HA,1)
    def consume_wq(half, hf):
        e(f"s_lshr_b32 s16, s{S_W}, 2"); e(f"s_mul_i32 s16, s16, {36*1024}")
        trbase(6, half, "s16")
        for kb in range(9):
            d=W1+4*(9*hf+kb); tr(d,14,kb*4096); tr(d+2,14,kb*4096+2048)
            if kb%4==3: e("s_waitcnt lgkmcnt(0)")
        e("s_waitcnt lgkmcnt(0)")
    g.vwait(c1); bar()
    consume_wq(HB,0); bar()
    l=g.label(); e(f"s_cmp_gt_u32 s{S_W}, 4"); e(f"s_cbranch_scc1 {l}")
    e(f"s_mov_b32 s16, {WS_MOD}"); e(f"s_mov_b32 s17, {WS_MOD+576*8}")
    poll(["buffer_load_dwordx4 v[16:19], v236, s[4:7], s16 offen sc1",
          "buffer_load_dwordx4 v[20:23], v236, s[4:7], s17 offen sc1"], [17,19,21,23], "s[28:29]", name="F1")
    g.stamp(2)
    unpack_cs(16,20,24,28)
    modulate(24,28)
    e(f"{l}:")
    c3=chunk_G(HB, True)
    g.vwait(c2); e("s_waitcnt lgkmcnt(0)"); bar()
    consume_wq(HA,1)
    for kb in range(18):
        as_=16+4*(kb%6)
        e(f"ds_read_b128 v[{as_}:{as_+3}], v8 offset:{HBUF+kb*64}")
        if kb>=3:
            k=kb-3; e("s_waitcnt lgkmcnt(3)")
            e(f"v_mfma_f32_16x16x32_bf16 v[60:63], v[{16+4*(k%6)}:{19+4*(k%6)}], v[{W1+4*k}:{W1+4*k+3}], {'0' if k==0 else 'v[60:63]'}")
    for k in range(15,18):
        e(f"s_waitcnt lgkmcnt({17-k})")
        e(f"v_mfma_f32_16x16x32_bf16 v[60:63], v[{16+4*(k%6)}:{19+4*(k%6)}], v[{W1+4*k}:{W1+4*k+3}], v[60:63]")
    e(f"s_lshl_b32 s16, s{S_R}, 10"); e(f"s_lshl_b32 s17, s{S_W}, 7"); e("s_add_u32 s16, s16, s17"); e(f"s_add_u32 s16, s16, {WS_Q}")
    e("v_cvt_pk_bf16_f32 v60, v60, v62"); e(f"v_mov_b32 v61, s{S_TAG}")
    g.vissue("buffer_store_dwordx2 v[60:61], v12, s[4:7], s16 offen sc1", False)
    g.stamp(3)
    bar()
    c4=chunk_1152(HA,S_WO,4096*1152,128,0)
    g.vwait(c3); bar()
    consume_G(HB, True)
    e("s_waitcnt lgkmcnt(0)"); bar()
    c5=chunk_1152(HB,S_WO,4096*1152,128,64)
    def consume_1152(half, hf, dst):
        e(f"s_lshr_b32 s16, s{S_W}, 2"); e("s_lshl_b32 s16, s16, 13")
        trbase(6, half, "s16")
        for i in range(5):
            if i==4:
                l=g.label(); e(f"s_cmp_gt_u32 s{S_W}, 3"); e(f"s_cbranch_scc1 {l}")
            for kl in range(2):
                d=dst+16*i+4*(2*hf+kl)
                tr(d,14,i*16384+kl*4096); tr(d+2,14,i*16384+kl*4096+2048)
            if i%2==1: e("s_waitcnt lgkmcnt(0)")
        e(f"{l}:")
        e("s_waitcnt lgkmcnt(0)")
    g.vwait(c4); bar(); consume_1152(HA,0,WO); bar()
    c6=chunk_w1(HA,0)
    g.vwait(c5); bar(); consume_1152(HB,1,WO); bar()
    c7=chunk_w1(HB,1)
    def consume_w1(half, cc):
        e(f"s_lshl_b32 s16, s{S_W}, 5")
        trbase(7, half, "s16")
        for kl in range(6):
            d=W1+4*(6*cc+kl); tr(d,14,kl*9216); tr(d+2,14,kl*9216+4608)
        e("s_waitcnt lgkmcnt(0)")
        for w in range(4,8):
            its=[(i,(w-4)+4*i) for i in range(5) if 6*cc<=(w-4)+4*i<6*cc+6]
            l=g.label(); e(f"s_cmp_lg_u32 s{S_W}, {w}"); e(f"s_cbranch_scc1 {l}")
            for i,kb in its:
                d=w1x(i); o=(kb-6*cc)*9216+(8-w)*32
                tr(d,14,o); tr(d+2,14,o+4608)
            e(f"{l}:")
        e("s_waitcnt lgkmcnt(0)")
    g.vwait(c6); bar(); consume_w1(HA,0); bar()
    c8=chunk_w1(HA,2)
    g.vwait(c7); bar(); consume_w1(HB,1); bar()
    c9=chunk_w2h(HB)
    g.vwait(c8); bar(); consume_w1(HA,2); bar()
    c10=chunk_1152(HA,S_W2,4608*1152,144,0)
    g.vwait(c9); bar()
    e(f"s_lshr_b32 s16, s{S_W}, 2"); e("s_lshl_b32 s16, s16, 11")
    trbase(6, HB, "s16")
    for i in range(5):
        if i==4:
            l=g.label(); e(f"s_cmp_gt_u32 s{S_W}, 3"); e(f"s_cbranch_scc1 {l}")
        tr(W2H+2*i,14,i*4096)
    e(f"{l}:"); e("s_waitcnt lgkmcnt(0)"); bar()
    c11=chunk_1152(HB,S_W2,4608*1152,144,64)
    g.stamp(4)
    e("v_cmp_gt_u32 s[24:25], 32, v1"); e("v_lshlrev_b32 v16, 3, v1")
    poll([f"buffer_load_dwordx2 v[18:19], v16, s[4:7], 0 offen offset:{WS_XCC} sc1"], [19], "s[24:25]", name="XC")
    e("v_readfirstlane_b32 s16, v18"); e("v_cmp_ne_u32 vcc, s16, v18"); e("s_and_b64 vcc, vcc, s[24:25]")
    e("s_cmp_eq_u64 vcc, 0"); e(f"s_cselect_b32 s{S_FAST}, {0 if cfg.get('noFast') else 1}, 0")
    l=g.label(); e(f"s_cmp_gt_u32 s{S_W}, 4"); e(f"s_cbranch_scc1 {l}")
    e(f"s_mov_b32 s16, {WS_MOD+3*576*8}"); e(f"s_mov_b32 s17, {WS_MOD+4*576*8}")
    poll(["buffer_load_dwordx4 v[16:19], v236, s[4:7], s16 offen sc1",
          "buffer_load_dwordx4 v[20:23], v236, s[4:7], s17 offen sc1"], [17,19,21,23], "s[28:29]", name="M2")
    unpack_cs(16,20,240,244)
    e(f"{l}:")
    l=g.label(); e(f"s_cmp_lg_u32 s{S_W}, 0"); e(f"s_cbranch_scc1 {l}"); e(f"s_cmp_gt_u32 s{S_R}, 17"); e(f"s_cbranch_scc1 {l}")
    e("v_and_b32 v16, 31, v1"); e("v_lshlrev_b32 v16, 3, v16"); e(f"s_lshl_b32 s16, s{S_R}, 8")
    e(f"s_add_u32 s17, s16, {WS_MOD+5*576*8}"); e(f"s_add_u32 s16, s16, {WS_MOD+2*576*8}")
    poll(["buffer_load_dwordx2 v[18:19], v16, s[4:7], s16 offen sc1",
          "buffer_load_dwordx2 v[20:21], v16, s[4:7], s17 offen sc1"], [19,21], name="M3")
    e("v_cmp_gt_u32 vcc, 32, v1")
    e("v_lshlrev_b32 v16, 16, v18"); e("v_and_b32 v17, 0xffff0000, v18"); e("v_cndmask_b32 v248, v17, v16, vcc")
    e("v_lshlrev_b32 v16, 16, v20"); e("v_and_b32 v17, 0xffff0000, v20"); e("v_cndmask_b32 v249, v17, v16, vcc")
    e(f"{l}:")
    lE=g.label("E1skip"); e(f"s_cmp_gt_u32 s{S_W}, 1"); e(f"s_cbranch_scc1 {lE}")
    e("v_cmp_gt_u32 s[24:25], 7, v1")
    e(f"s_lshl_b32 s16, s{S_W}, 5"); e(f"s_add_u32 s16, s16, s{S_R}")
    e("s_lshl_b32 s17, s16, 7"); e(f"s_add_u32 s17, s17, {WS_ML}")
    e(f"v_mov_b32 v17, {OOB}"); e("v_cndmask_b32 v16, v17, v237, s[24:25]")
    poll(["buffer_load_dwordx4 v[20:23], v16, s[4:7], s17 offen sc1"], [21,23], "s[24:25]", sleep=8, name="ML")
    e("v_mov_b32 v17, 0xff800000"); e("v_cndmask_b32 v20, v17, v20, s[24:25]")
    e("v_mov_b32 v24, v20")
    for m in ("quad_perm:[1,0,3,2]","quad_perm:[2,3,0,1]","row_half_mirror"):
        e(f"v_max_f32_dpp v24, v24, v24 {m} {DPP}")
    e("v_sub_f32 v20, v20, v24"); e("v_mul_f32 v20, s30, v20"); e("v_exp_f32 v20, v20")
    e("v_mul_f32 v24, v20, v22"); e("v_cndmask_b32 v24, 0, v24, s[24:25]")
    for m in ("quad_perm:[1,0,3,2]","quad_perm:[2,3,0,1]","row_half_mirror"):
        e(f"v_add_f32_dpp v24, v24, v24 {m} {DPP}")
    e("v_rcp_f32 v24, v24"); e("v_mul_f32 v20, v20, v24")
    for j in range(7): e(f"v_readlane_b32 s{76+j}, v20, {j}")
    g.stamp(5)
    e("s_lshl_b32 s16, s16, 13"); e(f"s_add_u32 s16, s16, {WS_E1}"); e("s_add_u32 s17, s16, 4096")
    e("s_mov_b32 s20, 0x7f"); e(f"s_mov_b32 s{S_CNT}, 0")
    e("L_e1:")
    for j in range(7):
        l=g.label(); e(f"s_bitcmp0_b32 s20, {j}"); e(f"s_cbranch_scc1 {l}")
        g.vissue(f"buffer_load_dwordx4 v[{16+4*j}:{19+4*j}], v237, s[4:7], s{16 if j<4 else 17} offen offset:{(j%4)*1024} sc1", False)
        e(f"{l}:")
    e("s_waitcnt vmcnt(0)")
    for j in range(7):
        e(f"v_cmp_ne_u32 vcc, s{S_TAG}, v{17+4*j}"); e(f"v_cmp_ne_u32 s[22:23], s{S_TAG}, v{19+4*j}"); e("s_or_b64 vcc, vcc, s[22:23]")
        e("s_cmp_eq_u64 vcc, 0"); e(f"s_cselect_b32 s21, {0xffffffff ^ (1<<j)}, -1"); e("s_and_b32 s20, s20, s21")
    e("s_cmp_eq_u32 s20, 0"); e("s_cbranch_scc1 L_e1d")
    if cfg.get('e1sleep',1): e(f"s_sleep {cfg.get('e1sleep',1)}")
    e(f"s_add_u32 s{S_CNT}, s{S_CNT}, 1"); e(f"s_cmp_lt_u32 s{S_CNT}, {POLL_MAX}"); e("s_cbranch_scc1 L_e1")
    e("L_e1d:")
    g.stamp(6)
    e("v_mul_f32 v44, s76, v16"); e("v_mul_f32 v45, s76, v18")
    for j in range(1,7):
        e(f"v_fmac_f32 v44, s{76+j}, v{16+4*j}"); e(f"v_fmac_f32 v45, s{76+j}, v{18+4*j}")
    e("v_cvt_pk_bf16_f32 v44, v44, v45")
    e(f"s_lshl_b32 s16, s{S_W}, 7"); e("v_add_u32 v45, s16, v10")
    e(f"ds_write_b32 v45, v44 offset:{OB}")
    e(f"{lE}:")
    e(f"s_lshr_b32 s16, s{S_W}, 1"); e("s_lshl_b32 s16, s16, 14"); e(f"s_and_b32 s17, s{S_W}, 1"); e("s_lshl_b32 s17, s17, 8"); e("s_add_u32 s16, s16, s17")
    e(f"s_lshl_b32 s17, s{S_R}, 9"); e("s_add_u32 s31, s16, s17")
    e("s_waitcnt vmcnt(0) lgkmcnt(0)"); bar()
    def pub_store(txt):
        a=g.label(); b=g.label()
        e(f"s_cmp_eq_u32 s{S_FAST}, 0"); e(f"s_cbranch_scc1 {a}")
        g.vissue(txt, False); e(f"s_branch {b}")
        e(f"{a}:"); g.vissue(txt+" sc1", False); e(f"{b}:")
    def gemv_out(abuf, wreg, area, extra=None):
        for kb in range(4): e(f"ds_read_b128 v[{16+4*kb}:{19+4*kb}], v9 offset:{abuf+kb*64}")
        if extra: extra[0]()
        e("s_waitcnt lgkmcnt(0)")
        ls=g.label()
        for i in range(5):
            if i==4: e(f"s_cmp_gt_u32 s{S_W}, 3"); e(f"s_cbranch_scc1 {ls}")
            d=40+4*i
            for kb in range(4):
                e(f"v_mfma_f32_16x16x32_bf16 v[{d}:{d+3}], v[{16+4*kb}:{19+4*kb}], v[{wreg+16*i+4*kb}:{wreg+16*i+4*kb+3}], {'0' if kb==0 else f'v[{d}:{d+3}]'}")
            if extra and i==0: extra[1]()
            if not extra and i>=1: store_tile(i-1, area)
        if not extra: store_tile(4, area); e(f"s_branch {ls}x")
        e(f"{ls}:")
        if not extra: store_tile(3, area); e(f"{ls}x:")
        if extra:
            ls=g.label()
            for i in range(5):
                if i==4: e(f"s_cmp_gt_u32 s{S_W}, 3"); e(f"s_cbranch_scc1 {ls}")
                d=40+4*i
                e(f"v_mfma_f32_16x16x16_bf16 v[{d}:{d+3}], v[60:61], v[{W2H+2*i}:{W2H+2*i+1}], v[{d}:{d+3}]")
            store_tile(4, area)
            e(f"{ls}:")
            for i in range(4): store_tile(i, area)
    def store_tile(i, area):
        d=40+4*i
        e(f"s_add_u32 s16, s31, {area+i*65536}")
        e(f"v_mov_b32 v{d+1}, s{S_TAG}"); e(f"v_mov_b32 v{d+3}, s{S_TAG}")
        pub_store(f"buffer_store_dwordx4 v[{d}:{d+3}], v11, s[4:7], s16 offen")
    gemv_out(OB, WO, WS_E2A)
    g.stamp(7)
    consume_1152(HA,0,WO); consume_1152(HB,1,WO)
    def gather_reduce(area, name):
        e(f"s_lshl_b32 s16, s{S_R}, 14"); e(f"s_lshl_b32 s17, s{S_W}, 11"); e("s_add_u32 s16, s16, s17"); e(f"s_add_u32 s16, s16, {area}")
        poll(["buffer_load_dwordx4 v[16:19], v237, s[4:7], s16 offen sc1",
              "buffer_load_dwordx4 v[20:23], v237, s[4:7], s16 offen offset:1024 sc1"], [17,19,21,23], name=name)
        e("v_add_f32 v16, v16, v20"); e("v_add_f32 v18, v18, v22")
        e("v_permlane32_swap_b32 v16, v18"); e("v_add_f32 v16, v16, v18")
        e(f"ds_write_b32 v250, v16 offset:{TRED}")
        e("s_waitcnt lgkmcnt(0)"); bar()
    e(f"s_lshl_b32 s16, s{S_W}, 8"); e("v_lshlrev_b32 v251, 2, v1"); e(f"v_add_u32 v251, {MISC}, v251"); e("v_add_u32 v250, s16, v251")
    def final_sum():
        for k in range(4): e(f"ds_read2st64_b32 v[{16+2*k}:{17+2*k}], v251 offset0:{TRED//256+2*k} offset1:{TRED//256+2*k+1}")
        e("s_waitcnt lgkmcnt(0)")
        e("v_add_f32 v16, v16, v17"); e("v_add_f32 v18, v18, v19"); e("v_add_f32 v20, v20, v21"); e("v_add_f32 v22, v22, v23")
        e("v_add_f32 v16, v16, v18"); e("v_add_f32 v20, v20, v22"); e("v_add_f32 v16, v16, v20")
        g.r1(16)
    l=g.label(); e(f"s_cmp_gt_u32 s{S_R}, 17"); e(f"s_cbranch_scc1 {l}")
    gather_reduce(WS_E2A,"E2A")
    e(f"s_cmp_lg_u32 s{S_W}, 0"); e(f"s_cbranch_scc1 {l}")
    final_sum()
    e("v_mul_f32 v16, v248, v16"); g.r1(16)
    e("v_add_f32 v230, v230, v16"); g.r1(230)
    e("v_mov_b32 v16, v230"); e(f"v_mov_b32 v17, s{S_TAG}")
    e("v_lshlrev_b32 v18, 2, v13")
    pub_store(f"buffer_store_dwordx2 v[16:17], v18, s[4:7], s84 offen")
    e(f"{l}:")
    g.stamp(8)
    e("v_lshrrev_b32 v24, 5, v1"); e("v_mul_u32_u24 v24, 4608, v24")
    l=g.label(); e(f"s_cmp_gt_u32 s{S_W}, 4"); e(f"s_cbranch_scc1 {l}")
    lp=g.label("E2B"); ld=g.label("E2Bd")
    e(f"s_mov_b32 s{S_CNT}, 0"); e(f"{lp}:")
    g.vissue("buffer_load_dwordx4 v[16:19], v236, s[4:7], s84 offen sc1", False)
    g.vissue("buffer_load_dwordx4 v[20:23], v236, s[4:7], s85 offen sc1", False)
    g.vissue("buffer_load_dwordx2 v[26:27], v24, s[4:7], s84 offen sc1", False)
    e("s_waitcnt vmcnt(0)")
    e(f"v_cmp_ne_u32 vcc, s{S_TAG}, v17")
    for r in (19,21,23): e(f"v_cmp_ne_u32 s[22:23], s{S_TAG}, v{r}"); e("s_or_b64 vcc, vcc, s[22:23]")
    e("s_and_b64 vcc, vcc, s[28:29]")
    e(f"v_cmp_ne_u32 s[22:23], s{S_TAG}, v27"); e("s_or_b64 vcc, vcc, s[22:23]")
    e(f"s_cbranch_vccz {ld}")
    e(f"s_add_u32 s{S_CNT}, s{S_CNT}, 1"); e(f"s_cmp_lt_u32 s{S_CNT}, {POLL_MAX}"); e(f"s_cbranch_scc1 {lp}")
    e(f"{ld}:"); e(f"{l}:")
    g.stamp(9)
    e("v_mov_b32 v40, v16"); e("v_mov_b32 v41, v18"); e("v_mov_b32 v42, v20"); e("v_mov_b32 v43, v22"); e("v_mov_b32 v44, v26")
    layernorm()
    modulate(240,244)
    e("s_waitcnt lgkmcnt(0)"); bar()
    g.stamp(10)
    lend=g.label("W1e")
    def w1_body(w):
        xs={ (w-4)+4*i:i for i in range(5) if (w-4)+4*i<18 } if w is not None else {}
        first=[True]
        def mm(k):
            a=16+4*(k%6)
            e(f"v_mfma_f32_16x16x32_bf16 v[60:63], v[{a}:{a+3}], v[{W1+4*k}:{W1+4*k+3}], {'0' if k==0 else 'v[60:63]'}")
            if k in xs:
                d=w1x(xs[k])
                e(f"v_mfma_f32_16x16x32_bf16 v[56:59], v[{a}:{a+3}], v[{d}:{d+3}], {'0' if first[0] else 'v[56:59]'}"); first[0]=False
        for kb in range(18):
            as_=16+4*(kb%6)
            e(f"ds_read_b128 v[{as_}:{as_+3}], v8 offset:{HBUF+kb*64}")
            if kb>=3: e("s_waitcnt lgkmcnt(3)"); mm(kb-3)
        for k in range(15,18): e(f"s_waitcnt lgkmcnt({17-k})"); mm(k)
        if w is not None:
            e("v_cndmask_b32 v56, v58, v56, s[86:87]")
            e(f"ds_write_b32 v233, v56 offset:{W1XP+(w-4)*128}")
    e("v_cmp_gt_u32 s[86:87], 16, v1")
    for w in range(4,8):
        l=g.label(); e(f"s_cmp_lg_u32 s{S_W}, {w}"); e(f"s_cbranch_scc1 {l}")
        e("s_nop 0")
        w1_body(w); e(f"s_branch {lend}"); e(f"{l}:")
    w1_body(None)
    e(f"{lend}:")
    e("v_cndmask_b32 v60, v62, v60, s[86:87]")
    g.r1(60); e("v_add_f32 v60, v60, v232"); g.r1(60); e("v_max_f32 v60, 0, v60"); e("v_mul_f32 v60, v60, v60")
    e("v_cvt_pk_bf16_f32 v60, v60, v60")
    e(f"ds_write_b16 v252, v60 offset:{HIDB}")
    e("s_waitcnt lgkmcnt(0)"); bar()
    g.stamp(11)
    def ex0():
        for p in range(4): e(f"ds_read_b128 v[{W1+4*p}:{W1+4*p+3}], v253 offset:{W1XP+p*128}")
    def ex1():
        t=W1
        for k in range(4): e(f"v_add_f32 v{t+k}, v{t+k}, v{t+4+k}"); e(f"v_add_f32 v{t+8+k}, v{t+8+k}, v{t+12+k}")
        for k in range(4): e(f"v_add_f32 v{t+k}, v{t+k}, v{t+8+k}")
        g.r2(t,t+1,t+4); g.r2(t+2,t+3,t+5)
        e(f"v_lshlrev_b32 v{t+4}, 16, v234"); e(f"v_and_b32 v{t+5}, 0xffff0000, v234"); e(f"v_lshlrev_b32 v{t+6}, 16, v235"); e(f"v_and_b32 v{t+7}, 0xffff0000, v235")
        for k in range(4): e(f"v_add_f32 v{t+k}, v{t+k}, v{t+4+k}")
        g.r2(t,t+1,t+4); g.r2(t+2,t+3,t+5)
        for k in range(4): e(f"v_max_f32 v{t+k}, 0, v{t+k}"); e(f"v_mul_f32 v{t+k}, v{t+k}, v{t+k}")
        e(f"v_cvt_pk_bf16_f32 v60, v{t}, v{t+1}"); e(f"v_cvt_pk_bf16_f32 v61, v{t+2}, v{t+3}")
    gemv_out(HIDB, WO, WS_E3, (ex0,ex1))
    g.stamp(12)
    e(f"s_cmp_gt_u32 s{S_R}, 17"); e("s_cbranch_scc1 L_end")
    gather_reduce(WS_E3,"E3")
    e(f"s_cmp_lg_u32 s{S_W}, 0"); e("s_cbranch_scc1 L_end")
    final_sum()
    e("v_add_f32 v16, v16, v231"); g.r1(16)
    e("v_mul_f32 v16, v249, v16"); g.r1(16)
    e("v_add_f32 v16, v230, v16"); e("v_cvt_pk_bf16_f32 v16, v16, v16")
    g.srd(12,S_OUT,2304)
    e("buffer_store_short v16, v13, s[12:15], 0 offen")
    g.stamp(13)
    e(f"s_cmp_lg_u32 s{S_R}, 0"); e("s_cbranch_scc1 L_end")
    e(f"v_mov_b32 v17, {OOB}"); e("v_cmp_eq_u32 vcc, 0, v1"); e("v_cndmask_b32 v17, v17, 0, vcc"); e(f"v_mov_b32 v18, s{S_TAG}")
    e(f"buffer_store_dword v18, v17, s[4:7], 0 offen offset:{WS_EPOCH} sc1")

def build(cfg):
    g=G(cfg)
    prologue(g); stream(g); tail(g)
    g.e("L_end:"); g.e("s_endpgm")
    body,n=fix_hazards(g.L)
    H=[f"; @launch grid=(256,1,1) block=(512,1,1) lds={LDS_BYTES}",
       '.amdgcn_target "amdgcn-amd-amdhsa--gfx950"', ".text", f".globl {KN}_kernel", ".p2align 8", f".type {KN}_kernel,@function", f"{KN}_kernel:"]
    T=['.section .rodata,"a"', ".p2align 6", f".amdhsa_kernel {KN}_kernel", "  .amdhsa_next_free_vgpr 256", "  .amdhsa_next_free_sgpr 96",
       "  .amdhsa_accum_offset 256", "  .amdhsa_group_segment_fixed_size 0", "  .amdhsa_kernarg_size 120", "  .amdhsa_user_sgpr_count 2",
       "  .amdhsa_user_sgpr_kernarg_segment_ptr 1", "  .amdhsa_system_sgpr_workgroup_id_x 1", ".end_amdhsa_kernel"]
    return "\n".join(H+body+T)+"\n", n
if __name__=="__main__":
    import json
    out=sys.argv[1]; cfg=json.loads(sys.argv[2]) if len(sys.argv)>2 else {}
    s,n=build(cfg); open(out,"w").write(s); print(out,"nops inserted",n,"lines",s.count("\n"))
```

```python
import sys
from asmlib import fix_hazards
KN = "adaLN_cond__gqa_block_cached__dense_activation_squared_relu__decode"

WS_EPOCH=0; WS_XCC=0x100; WS_MOD=0x1000; WS_Q=0x8000; WS_ML=0x10000; WS_X1=0x12000
WS_E2A=0x20000; WS_E3=0x70000; WS_E1=0xC0000; WS_STAMP=0x200000; WS_SIZE=0x400000
OOB=0x80000000
POLL_MAX=1<<18

class G:
    def __init__(s, cfg):
        s.L=[]; s.cfg=cfg; s.vm=0; s.lab=0
    def e(s, x): s.L.append(x)
    def label(s, p="L"):
        s.lab+=1; return f"{p}_{s.lab}"
    def vissue(s, txt, counted=True):
        s.e(txt)
        if counted:
            s.vm+=1; return s.vm
        return None
    def vwait(s, tok):
        n=s.vm-tok
        assert 0<=n<=63, n
        s.e(f"s_waitcnt vmcnt({n})")
    def srd(s, d, ptr, nbytes):
        s.e(f"s_mov_b32 s{d}, s{ptr}"); s.e(f"s_mov_b32 s{d+1}, s{ptr+1}")
        s.e(f"s_mov_b32 s{d+2}, {nbytes}"); s.e(f"s_mov_b32 s{d+3}, 0x20000")
    def stamp(s, idx):
        if s.cfg.get('dbgtime') and getattr(s,'intail',False):
            m={0:88,3:89,4:90,6:91,8:92,10:93,13:94}
            if idx in m:
                s.e("s_memrealtime s[70:71]"); s.e("s_waitcnt lgkmcnt(0)"); s.e(f"s_mov_b32 s{m[idx]}, s70")
            return
        if not s.cfg.get('stamp'): return
        s.e("s_memrealtime s[70:71]"); s.e("s_waitcnt lgkmcnt(0)")
        s.e(f"v_mov_b32 v{s.stv}, s70")
        s.e(f"buffer_store_dword v{s.stv}, v{s.stv+1}, s[4:7], 0 offen offset:{idx*4}")
    def r2(s, a, b, t):
        s.e(f"v_cvt_pk_bf16_f32 v{t}, v{a}, v{b}")
        s.e(f"v_lshlrev_b32 v{a}, 16, v{t}")
        s.e(f"v_and_b32 v{b}, 0xffff0000, v{t}")
    def r1(s, a):
        s.e(f"v_cvt_pk_bf16_f32 v{a}, v{a}, v{a}")
        s.e(f"v_and_b32 v{a}, 0xffff0000, v{a}")

S_X,S_K,S_V,S_WQ,S_WO,S_W1,S_B1,S_W2,S_B2,S_C,S_WM,S_OUT,S_DBG,S_WS = 32,34,36,38,40,44,46,48,50,52,54,56,58,60
S_W=62; S_R=63; S_J=64; S_EP=65; S_TAG=66; S_CNT=67; S_FAST=68
DPP="row_mask:0xf bank_mask:0xf"

def prologue(g):
    e=g.e
    e("s_cmp_ge_u32 s2, 256"); e("s_cbranch_scc1 L_end")
    e("s_load_dwordx16 s[32:47], s[0:1], 0")
    e("s_load_dwordx8 s[48:55], s[0:1], 64")
    e("s_load_dwordx4 s[56:59], s[0:1], 96")
    e("s_load_dwordx2 s[60:61], s[0:1], 112")
    e("v_and_b32 v1, 63, v0")
    e("v_lshrrev_b32 v2, 6, v0")
    e(f"s_lshr_b32 s{S_R}, s2, 3"); e(f"s_and_b32 s{S_J}, s2, 7")
    e(f"v_readfirstlane_b32 s{S_W}, v2")
    e(f"s_cmp_eq_u32 s{S_J}, 0"); e("s_cbranch_scc1 L_tail")

def ws_setup(g):
    e=g.e
    e(f"s_load_dword s{S_EP}, s[{S_WS}:{S_WS+1}], {WS_EPOCH}")
    g.srd(4, S_WS, WS_SIZE)

def stamp_setup(g, v):
    g.stv=v
    if not g.cfg.get('stamp'): return
    e=g.e
    e("s_lshl_b32 s70, s2, 3"); e(f"s_add_u32 s70, s70, s{S_W}"); e("s_lshl_b32 s70, s70, 6"); e(f"s_add_u32 s70, s70, {WS_STAMP}")
    e(f"v_mov_b32 v{v+1}, s70"); e(f"v_mov_b32 v{v}, {OOB}")
    e("v_cmp_eq_u32 vcc, 0, v1"); e(f"v_cndmask_b32 v{v+1}, v{v}, v{v+1}, vcc")

def stream(g):
    e=g.e; cfg=g.cfg
    KF=cfg.get('kvflags','nt'); D=cfg.get('depth',6); DV=cfg.get('depthv',17)
    NG=37; NE=16 if cfg.get('stamp') else 17
    KR=16; VE=164; QF=232; DS=236; ACC=252
    QB=0; MAXB=512; LB=576; RED=1024
    def kreg(i): return KR+4*i
    def vreg(i): return VE+4*i if i<NE else kreg(i-NE+10)
    def preg(i): return KR+i
    e("v_lshrrev_b32 v6, 4, v1"); e("v_bfe_u32 v7, v1, 2, 2"); e("v_and_b32 v8, 3, v1")
    e("v_lshlrev_b32 v6, 6, v6"); e("v_lshlrev_b32 v7, 8, v7"); e("v_lshlrev_b32 v8, 4, v8")
    e("v_add3_u32 v2, v6, v7, v8")
    e("v_lshlrev_b32 v3, 4, v1")
    e(f"s_sub_u32 s{S_J}, s{S_J}, 1")
    e(f"s_lshl_b32 s16, s{S_J}, 3"); e(f"s_add_u32 s16, s16, s{S_W}")
    e("s_mul_i32 s17, s16, 36"); e("s_min_u32 s18, s16, 32"); e("s_add_u32 s17, s17, s18")
    e("s_cmp_lt_u32 s16, 32")
    e(f"s_cselect_b32 s19, 0, {OOB}")
    e("s_or_b32 s18, s19, 0x7f800000")
    e("s_lshl_b32 s17, s17, 10"); e(f"s_lshl_b32 s16, s{S_R}, 21"); e("s_add_u32 s16, s16, s17")
    e("v_or_b32 v4, s19, v2"); e("v_or_b32 v5, s19, v3")
    e("s_waitcnt lgkmcnt(0)")
    g.srd(8,S_K,0x4000000); g.srd(12,S_V,0x4000000)
    ws_setup(g)
    ktok=[]; vtok=[None]*NG
    def kload(i):
        if i%4==0: e(f"s_add_u32 s17, s16, {i*1024}")
        off = 4 if i==NG-1 else 2
        ktok.append(g.vissue(f"buffer_load_dwordx4 v[{kreg(i)}:{kreg(i)+3}], v{off}, s[8:11], s17 offen offset:{(i%4)*1024} {KF}"))
    def vload(i):
        e(f"s_add_u32 s17, s16, {(i//4)*4096}")
        off = 5 if i==NG-1 else 3
        vtok[i]=g.vissue(f"buffer_load_dwordx4 v[{vreg(i)}:{vreg(i)+3}], v{off}, s[12:15], s17 offen offset:{(i%4)*1024} {KF}")
    for i in range(NG):
        kload(i)
        if i==D-1:
            stamp_setup(g, 228)
            g.stamp(0)
            e("s_waitcnt lgkmcnt(0)")
            e(f"s_add_u32 s{S_TAG}, s{S_EP}, 1")
            e("v_and_b32 v6, 1, v1"); e("v_mov_b32 v7, 0xffff"); e("v_lshlrev_b32 v6, 4, v6"); e("v_lshlrev_b32 v7, v6, v7")
            e("v_bfe_u32 v6, v1, 1, 2")
            for k in range(4):
                e(f"v_cmp_eq_u32 vcc, {k}, v6"); e(f"v_cndmask_b32 v{10+k}, 0, v7, vcc")
            e("s_mov_b32 s19, 0x3db504f3")
            e("s_mov_b32 s20, 0x3fb8aa3b")
            e(f"s_and_b32 s21, s{S_R}, 15"); e("s_lshl_b32 s21, s21, 11"); e(f"s_add_u32 s21, s21, {WS_Q}")
            e(f"s_cmp_lt_u32 s{S_R}, 16"); e("s_cselect_b32 s24, 0, 0x02020202"); e("s_add_u32 s24, s24, 0x05040100")
            e("v_mov_b32 v8, 0xff800000"); e("v_mov_b32 v9, 0")
            for k in range(4): e(f"v_mov_b32 v{ACC+k}, 0")
        if i>=D-1: e(f"s_waitcnt vmcnt({D-1})")
    e(f"s_cmp_lg_u32 s{S_W}, 0"); e("s_cbranch_scc1 L_s_nopoll")
    g.vissue(f"buffer_load_dwordx4 v[{DS}:{DS+3}], v3, s[4:7], s21 offen sc1", False)
    g.vissue(f"buffer_load_dwordx4 v[{DS+4}:{DS+7}], v3, s[4:7], s21 offen offset:1024 sc1", False)
    e("L_s_nopoll:")
    ptok=g.vm
    for i in range(NE):
        vload(i)
        if i>=DV-1 and i<NE-1: e(f"s_waitcnt vmcnt({DV-1})")
    g.vwait(ptok)
    g.stamp(1)
    e(f"s_cmp_lg_u32 s{S_W}, 0"); e("s_cbranch_scc1 L_s_qdone")
    e(f"s_mov_b32 s{S_CNT}, 0")
    e("L_s_qchk:")
    e(f"v_cmp_ne_u32 vcc, s{S_TAG}, v{DS+1}"); e(f"v_cmp_ne_u32 s[22:23], s{S_TAG}, v{DS+3}"); e("s_or_b64 vcc, vcc, s[22:23]")
    e(f"v_cmp_ne_u32 s[22:23], s{S_TAG}, v{DS+5}"); e("s_or_b64 vcc, vcc, s[22:23]")
    e(f"v_cmp_ne_u32 s[22:23], s{S_TAG}, v{DS+7}"); e("s_or_b64 vcc, vcc, s[22:23]")
    e("s_cbranch_vccz L_s_qok")
    e(f"s_add_u32 s{S_CNT}, s{S_CNT}, 1"); e(f"s_cmp_gt_u32 s{S_CNT}, {POLL_MAX}"); e("s_cbranch_scc1 L_s_qok")
    e("s_sleep 2")
    g.vissue(f"buffer_load_dwordx4 v[{DS}:{DS+3}], v3, s[4:7], s21 offen sc1", False)
    g.vissue(f"buffer_load_dwordx4 v[{DS+4}:{DS+7}], v3, s[4:7], s21 offen offset:1024 sc1", False)
    e("s_waitcnt vmcnt(0)"); e("s_branch L_s_qchk")
    e("L_s_qok:")
    e(f"v_perm_b32 v6, v{DS+2}, v{DS}, s24"); e(f"v_perm_b32 v7, v{DS+6}, v{DS+4}, s24")
    e("v_lshlrev_b32 v14, 2, v1")
    e(f"ds_write_b32 v14, v6 offset:{QB}"); e(f"ds_write_b32 v14, v7 offset:{QB+256}")
    e("s_waitcnt lgkmcnt(0)")
    e("L_s_qdone:")
    e("v_bfe_u32 v6, v1, 3, 1"); e("v_lshlrev_b32 v6, 8, v6"); e("v_lshrrev_b32 v7, 4, v1"); e("v_lshl_add_u32 v6, v7, 6, v6")
    e("v_and_b32 v7, 3, v1"); e("v_lshl_add_u32 v6, v7, 4, v6")
    e("s_barrier")
    e(f"ds_read_b128 v[{QF}:{QF+3}], v6 offset:{QB}")
    e("s_waitcnt lgkmcnt(0)")
    g.stamp(2)
    def mf(i):
        d=DS+4*(i%4)
        e(f"v_mfma_f32_16x16x32_bf16 v[{d}:{d+3}], v[{kreg(i)}:{kreg(i)+3}], v[{QF}:{QF+3}], 0")
        if 10<=i<10+NG-NE: vload(i-10+NE)
    def rnd_ops(a,b,ta,tb):
        o=[]
        o.append(f"v_cvt_pk_bf16_f32 v2, v{ta}, v{tb}")
        o.append(f"v_lshlrev_b32 v{ta}, 16, v2"); o.append(f"v_and_b32 v{tb}, 0xffff0000, v2")
        o.append(f"v_mul_f32 v{ta}, s19, v{ta}")
        if b is not None: o.append(f"v_mul_f32 v{tb}, s19, v{tb}")
        o.append(f"v_cvt_pk_bf16_f32 v2, v{ta}, v{tb}")
        o.append(f"v_lshlrev_b32 v{preg(a)}, 16, v2")
        if b is not None:
            o.append(f"v_and_b32 v{preg(b)}, 0xffff0000, v2")
            o.append(f"v_max3_f32 v8, v8, v{preg(a)}, v{preg(b)}")
        else:
            o.append(f"v_min_f32 v{preg(a)}, s18, v{preg(a)}")
            o.append(f"v_max_f32 v8, v8, v{preg(a)}")
        return o
    mf(0); mf(1)
    prev=[]
    nb=(NG+1)//2
    for n in range(nb):
        a=2*n; b=2*n+1 if 2*n+1<NG else None
        if a+2<NG: mf(a+2)
        if a+3<NG: mf(a+3)
        ta,tb=(6,7) if n%2==0 else (14,15)
        da=DS+4*(a%4); db=DS+4*((a+1)%4)
        dp=[]
        for u in range(4):
            qp=f"quad_perm:[{u},{u},{u},{u}] {DPP}"
            if u==0:
                dp.append(f"v_mov_b32_dpp v{ta}, v{da} {qp}")
                if b is not None: dp.append(f"v_mov_b32_dpp v{tb}, v{db} {qp}")
            else:
                dp.append(f"v_add_f32_dpp v{ta}, v{da+u}, v{ta} {qp}")
                if b is not None: dp.append(f"v_add_f32_dpp v{tb}, v{db+u}, v{tb} {qp}")
        pi=0
        step=2 if b is not None else 1
        for k in range(0,len(dp),step):
            for x in dp[k:k+step]: e(x)
            for x in prev[pi:pi+2]: e(x)
            pi+=2
        for x in prev[pi:]: e(x)
        prev=rnd_ops(a,b,ta,tb if b is not None else ta)
    for x in prev: e(x)
    e("v_mov_b32 v6, v8"); e("v_permlane16_swap_b32 v8, v6"); e("v_max_f32 v8, v8, v6")
    e("v_mov_b32 v6, v8"); e("v_permlane32_swap_b32 v8, v6"); e("v_max_f32 v8, v8, v6")
    e("v_bfe_u32 v6, v1, 3, 1"); e("v_lshlrev_b32 v6, 5, v6")
    e(f"s_lshl_b32 s22, s{S_W}, 2"); e("v_add_u32 v7, s22, v6")
    e(f"ds_write_b32 v7, v8 offset:{MAXB}")
    e("s_waitcnt lgkmcnt(0)"); e("s_barrier")
    e(f"ds_read_b128 v[{DS}:{DS+3}], v6 offset:{MAXB}"); e(f"ds_read_b128 v[{DS+4}:{DS+7}], v6 offset:{MAXB+16}")
    e("s_waitcnt lgkmcnt(0)")
    e(f"v_max3_f32 v8, v{DS}, v{DS+1}, v{DS+2}"); e(f"v_max3_f32 v14, v{DS+3}, v{DS+4}, v{DS+5}")
    e(f"v_max3_f32 v8, v8, v{DS+6}, v{DS+7}"); e("v_max_f32 v8, v8, v14")
    e("v_mul_f32 v14, s20, v8")
    for i in range(NG):
        e(f"v_fma_f32 v{preg(i)}, v{preg(i)}, s20, -v14")
    for i in range(NG):
        e(f"v_exp_f32 v{preg(i)}, v{preg(i)}")
        if i>=1:
            e(f"v_add_f32 v9, v9, v{preg(i-1)}"); e(f"v_cvt_pk_bf16_f32 v{preg(i-1)}, v{preg(i-1)}, v{preg(i-1)}")
    e(f"v_add_f32 v9, v9, v{preg(NG-1)}"); e(f"v_cvt_pk_bf16_f32 v{preg(NG-1)}, v{preg(NG-1)}, v{preg(NG-1)}")
    e("v_mov_b32 v15, v9"); e("v_permlane16_swap_b32 v9, v15"); e("v_add_f32 v9, v9, v15")
    e("v_mov_b32 v15, v9"); e("v_permlane32_swap_b32 v9, v15"); e("v_add_f32 v9, v9, v15")
    e(f"ds_write_b32 v7, v9 offset:{LB}")
    e("v_lshrrev_b32 v2, 5, v1"); e("v_lshlrev_b32 v2, 9, v2"); e("v_and_b32 v4, 15, v1"); e("v_lshl_add_u32 v2, v4, 5, v2")
    e("v_bfe_u32 v4, v1, 4, 1"); e("v_lshl_add_u32 v2, v4, 4, v2"); e(f"s_lshl_b32 s22, s{S_W}, 10"); e("v_add_u32 v2, s22, v2")
    e(f"s_lshl_b32 s22, s{S_W}, 9"); e("v_lshlrev_b32 v4, 3, v1"); e("v_add_u32 v4, s22, v4")
    e(f"s_lshl_b32 s25, s{S_R}, 1"); e(f"s_add_u32 s25, s25, s{S_W}"); e("s_lshl_b32 s25, s25, 3"); e(f"s_add_u32 s25, s25, s{S_J}")
    e("s_lshl_b32 s25, s25, 10"); e(f"s_add_u32 s25, s25, {WS_E1}")
    def abuild(i):
        a=DS+4*(i%2)
        for k in range(4): e(f"v_and_b32 v{a+k}, v{preg(i)}, v{10+k}")
    g.stamp(3)
    abuild(0)
    for i in range(NG):
        if i+1<NG: abuild(i+1)
        g.vwait(vtok[i])
        a=DS+4*(i%2)
        e(f"v_mfma_f32_16x16x32_bf16 v[{ACC}:{ACC+3}], v[{a}:{a+3}], v[{vreg(i)}:{vreg(i)+3}], v[{ACC}:{ACC+3}]")
        if i==4:
            e("s_waitcnt lgkmcnt(0)"); e("s_barrier")
            e(f"s_cmp_lg_u32 s{S_W}, 0"); e("s_cbranch_scc1 L_s_noml")
            t=DS+8
            e(f"ds_read_b128 v[{t}:{t+3}], v6 offset:{LB}"); e(f"ds_read_b128 v[{t+4}:{t+7}], v6 offset:{LB+16}")
            e(f"s_lshl_b32 s22, s{S_R}, 8"); e(f"s_lshl_b32 s23, s{S_J}, 4"); e("s_add_u32 s22, s22, s23"); e(f"s_add_u32 s22, s22, {WS_ML}")
            e("v_lshlrev_b32 v14, 2, v6")
            e("v_and_b32 v15, 0x37, v1"); e("v_cmp_eq_u32 vcc, 0, v15"); e(f"v_mov_b32 v15, {OOB}"); e("v_cndmask_b32 v14, v15, v14, vcc")
            e("s_waitcnt lgkmcnt(0)")
            e(f"v_add_f32 v{t}, v{t}, v{t+1}"); e(f"v_add_f32 v{t+2}, v{t+2}, v{t+3}"); e(f"v_add_f32 v{t+4}, v{t+4}, v{t+5}"); e(f"v_add_f32 v{t+6}, v{t+6}, v{t+7}")
            e(f"v_add_f32 v{t}, v{t}, v{t+2}"); e(f"v_add_f32 v{t+4}, v{t+4}, v{t+6}"); e(f"v_add_f32 v{t+2}, v{t}, v{t+4}")
            e(f"v_mov_b32 v{t}, v8"); e(f"v_mov_b32 v{t+1}, s{S_TAG}"); e(f"v_mov_b32 v{t+3}, s{S_TAG}")
            g.vissue(f"buffer_store_dwordx4 v[{t}:{t+3}], v14, s[4:7], s22 offen sc1", False)
            e("L_s_noml:")
    e(f"ds_write_b128 v2, v[{ACC}:{ACC+3}] offset:{RED}")
    g.stamp(4)
    e("s_waitcnt lgkmcnt(0)"); e("s_barrier")
    e(f"s_cmp_gt_u32 s{S_W}, 1"); e("s_cbranch_scc1 L_end")
    t=KR
    for w in range(8): e(f"ds_read_b64 v[{t+2*w}:{t+2*w+1}], v4 offset:{RED+w*1024}")
    e(f"v_mov_b32 v{DS+1}, s{S_TAG}"); e(f"v_mov_b32 v{DS+3}, s{S_TAG}")
    e("s_waitcnt lgkmcnt(0)")
    for st in (2,4):
        for w in range(0,16,2*st):
            e(f"v_add_f32 v{t+w}, v{t+w}, v{t+w+st}"); e(f"v_add_f32 v{t+w+1}, v{t+w+1}, v{t+w+st+1}")
    e(f"v_add_f32 v{DS}, v{t}, v{t+8}"); e(f"v_add_f32 v{DS+2}, v{t+1}, v{t+9}")
    e(f"buffer_store_dwordx4 v[{DS}:{DS+3}], v3, s[4:7], s25 offen sc1")
    g.stamp(5)
    e("s_endpgm")

HA=0; HB=73728; MISC=147456
SCB=0; HBUF=2304; OB=4608; HIDB=5376; W1XP=6144; TRED=6656; STAT=8704
LDS_BYTES=MISC+8832
WO=64; W1=144; W2H=220
def w1x(i): return 128+4*i if i<4 else 216

def tail(g):
    e=g.e; cfg=g.cfg
    WF=cfg.get('wflags','nt'); W1F=cfg.get('w1flags','')
    g.vm=0; g.intail=True
    e("L_tail:")
    if cfg.get('dbgtime'): e("s_memrealtime s[86:87]")
    e("v_lshrrev_b32 v16, 3, v1"); e("v_bfe_u32 v17, v1, 1, 2"); e("v_lshrrev_b32 v18, 4, v1")
    e("v_sub_u32 v17, v17, v18"); e("v_and_b32 v17, 3, v17"); e("v_lshlrev_b32 v17, 5, v17")
    e("v_and_b32 v18, 1, v1"); e("v_lshl_add_u32 v17, v18, 4, v17")
    e("v_mul_u32_u24 v2, 6912, v16"); e("v_add_u32 v2, v2, v17")
    e("v_lshl_add_u32 v3, v16, 13, v17")
    e("v_mul_u32_u24 v4, 1152, v16"); e("v_add_u32 v4, v4, v17")
    e("s_waitcnt lgkmcnt(0)")
    if cfg.get('dbgtime'): e("s_mov_b32 s95, s86")
    ws_setup(g)
    def dma(voff, gconst, lconst, flags):
        e(f"s_add_u32 m0, s19, {lconst}")
        e(f"s_add_u32 s17, s18, {gconst}")
        return g.vissue(f"buffer_load_dwordx4 v{voff}, s[8:11], s17 offen {flags} lds")
    def chunk_G(half, second):
        g.srd(8,S_WM,576*3456*2)
        if second:
            e(f"s_cmp_lt_u32 s{S_R}, 10"); e(f"s_cselect_b32 s10, 0, {576*3456*2}")
            e(f"s_add_u32 s18, s{S_R}, 22"); e("s_lshl_b32 s18, s18, 7")
        else:
            e(f"s_lshl_b32 s18, s{S_R}, 7")
        e(f"s_mul_i32 s17, s{S_W}, {8*6912}"); e("s_add_u32 s18, s18, s17")
        e(f"s_lshl_b32 s19, s{S_W}, 10")
        for i in range(9): t=dma(2, i*64*6912, half+i*8192, WF)
        return t
    def chunk_wq(half, hf):
        g.srd(8,S_WQ,576*4096*2)
        e(f"s_and_b32 s17, s{S_W}, 1"); e(f"s_lshr_b32 s19, s{S_W}, 1")
        e(f"s_lshl_b32 s18, s{S_R}, 8"); e("s_lshl_b32 s20, s17, 7"); e("s_add_u32 s18, s18, s20")
        e("s_lshl_b32 s20, s19, 16"); e("s_add_u32 s18, s18, s20")
        e("s_mul_i32 s17, s17, 36"); e("s_add_u32 s19, s19, s17"); e("s_lshl_b32 s19, s19, 10")
        for i in range(9): t=dma(3, hf*288*8192+i*32*8192, half+i*4096, WF)
        return t
    def chunk_1152(half, ptr, nbytes, rows_per_wg, row0):
        g.srd(8,ptr,nbytes)
        e(f"s_mul_i32 s18, s{S_R}, {rows_per_wg*1152}"); e(f"s_mul_i32 s17, s{S_W}, {8*1152}"); e("s_add_u32 s18, s18, s17")
        e(f"s_lshl_b32 s19, s{S_W}, 10")
        for i in range(9): t=dma(4, row0*1152+i*128, half+i*8192, WF)
        return t
    def chunk_w2h(half):
        g.srd(8,S_W2,4608*1152)
        e(f"s_and_b32 s17, s{S_W}, 1"); e(f"s_mul_i32 s17, s17, {8*1152}")
        e(f"s_mul_i32 s18, s{S_R}, {144*1152}"); e("s_add_u32 s18, s18, s17")
        e(f"s_lshr_b32 s17, s{S_W}, 1"); e("s_lshl_b32 s17, s17, 7"); e("s_add_u32 s18, s18, s17")
        e(f"s_lshl_b32 s19, s{S_W}, 10")
        l=g.label()
        e(f"s_cmp_gt_u32 s{S_W}, 1"); e(f"s_cbranch_scc1 {l}")
        e(f"s_add_u32 m0, s19, {half+16384}"); e(f"s_add_u32 s17, s18, {128*1152+1024}")
        g.vissue(f"buffer_load_dwordx4 v4, s[8:11], s17 offen {WF} lds", False)
        e(f"{l}:")
        for i in range(2): t=dma(4, 128*1152+i*512, half+i*8192, WF)
        return t
    def chunk_w1(half, cc):
        g.srd(8,S_W1,576*9216)
        e(f"s_mul_i32 s18, s{S_R}, 288"); e(f"s_mul_i32 s17, s{S_W}, {3*9216}"); e("s_add_u32 s18, s18, s17")
        e(f"s_mul_i32 s19, s{S_W}, 864")
        e("s_mov_b64 exec, s[26:27]")
        for i in range(8): t=dma(5, (192*cc+24*i)*9216, half+i*8*864, W1F)
        e("s_mov_b64 exec, -1")
        return t
    def tr(dst, base, off):
        if off<65536: e(f"ds_read_b64_tr_b16 v[{dst}:{dst+1}], v{base} offset:{off}")
        else: e(f"ds_read_b64_tr_b16 v[{dst}:{dst+1}], v{base+1} offset:{off-65536}")
    def trbase(src, half, sextra=None):
        if sextra: e(f"v_add_u32 v14, {sextra}, v{src}");
        else: e(f"v_mov_b32 v14, v{src}")
        if half: e(f"v_add_u32 v14, {half}, v14")
        e("v_add_u32 v15, 0x10000, v14")
    bar=lambda: e("s_barrier")

    c0=chunk_G(HA, False)
    c1=chunk_wq(HB, 0)
    stamp_setup(g, 254); g.stamp(0)
    e("v_lshlrev_b32 v16, 2, v0")
    e("v_cmp_gt_u32 vcc, 288, v0"); e("s_mov_b64 s[28:29], vcc")
    e(f"v_mov_b32 v17, {OOB}"); e("v_cndmask_b32 v16, v17, v16, s[28:29]")
    g.srd(12,S_C,2304)
    g.vissue("buffer_load_dword v20, v16, s[12:15], 0 offen"); g.vissue("buffer_load_dword v21, v16, s[12:15], 0 offen offset:1152")
    g.srd(12,S_X,2304)
    g.vissue("buffer_load_dword v22, v16, s[12:15], 0 offen"); g.vissue("buffer_load_dword v23, v16, s[12:15], 0 offen offset:1152")
    e("v_lshrrev_b32 v18, 5, v1"); e("v_mul_u32_u24 v18, 1152, v18")
    g.vissue("buffer_load_ushort v24, v18, s[12:15], 0 offen")
    e("v_and_b32 v19, 31, v1"); e(f"s_lshl_b32 s16, s{S_R}, 5"); e("v_add_u32 v19, s16, v19")
    e("v_lshlrev_b32 v25, 1, v19"); e("v_add_u32 v13, v25, v18")
    g.vissue("buffer_load_ushort v230, v13, s[12:15], 0 offen")
    g.srd(12,S_B2,1152)
    g.vissue("buffer_load_ushort v231, v25, s[12:15], 0 offen")
    g.srd(12,S_B1,9216)
    e(f"s_mul_i32 s16, s{S_R}, 288"); e(f"s_lshl_b32 s17, s{S_W}, 5"); e("s_add_u32 s17, s17, s16")
    e("v_and_b32 v25, 15, v1"); e("v_lshlrev_b32 v25, 1, v25")
    g.vissue("buffer_load_ushort v232, v25, s[12:15], s17 offen")
    e("v_lshrrev_b32 v25, 4, v1"); e("v_lshlrev_b32 v25, 3, v25")
    tsm=g.vissue("buffer_load_dwordx2 v[234:235], v25, s[12:15], s16 offen offset:256")
    e("v_mul_u32_u24 v25, 3641, v1"); e("v_lshrrev_b32 v25, 16, v25"); e("v_mul_u32_u24 v26, 18, v25"); e("v_sub_u32 v26, v1, v26")
    e("v_mul_u32_u24 v5, 9216, v25"); e("v_lshl_add_u32 v5, v26, 4, v5")
    e("v_cmp_gt_u32 s[26:27], 54, v1")
    e("v_bfe_u32 v25, v1, 2, 3"); e("v_lshrrev_b32 v26, 1, v25"); e(f"v_add_u32 v26, s{S_W}, v26"); e("v_and_b32 v26, 3, v26")
    e("v_lshlrev_b32 v6, 7, v25"); e("v_lshl_add_u32 v6, v26, 5, v6"); e("v_and_b32 v26, 3, v1"); e("v_lshl_add_u32 v6, v26, 3, v6")
    e("v_lshrrev_b32 v25, 5, v1"); e("v_lshl_add_u32 v6, v25, 10, v6")
    e("v_lshrrev_b32 v25, 2, v1"); e("v_mul_u32_u24 v7, 288, v25"); e("v_lshl_add_u32 v7, v26, 3, v7")
    e("v_bfe_u32 v25, v1, 1, 1"); e("v_lshrrev_b32 v26, 4, v1"); e("v_lshlrev_b32 v26, 4, v26"); e(f"v_add_u32 v26, {MISC}, v26")
    e("v_mul_u32_u24 v8, 1152, v25"); e("v_add_u32 v8, v8, v26")
    e("v_mul_u32_u24 v9, 384, v25"); e("v_add_u32 v9, v9, v26")
    e("v_lshrrev_b32 v25, 4, v0"); e("v_lshlrev_b32 v10, 6, v25")
    e("v_bfe_u32 v25, v0, 1, 2"); e("v_lshl_add_u32 v10, v25, 4, v10")
    e("v_bfe_u32 v25, v0, 3, 1"); e("v_lshl_add_u32 v10, v25, 3, v10")
    e("v_and_b32 v25, 1, v0"); e("v_lshl_add_u32 v10, v25, 2, v10"); e(f"v_add_u32 v10, {MISC}, v10")
    e("v_cmp_gt_u32 vcc, 16, v1"); e("v_lshlrev_b32 v25, 4, v1"); e("v_cndmask_b32 v11, v17, v25, vcc")
    e("v_lshlrev_b32 v25, 3, v1"); e("v_cndmask_b32 v12, v17, v25, vcc")
    e("v_lshlrev_b32 v25, 4, v0"); e("v_cndmask_b32 v236, v17, v25, s[28:29]"); e("v_lshlrev_b32 v237, 4, v1")
    e("s_mov_b32 s30, 0x3fb8aa3b")
    e("s_waitcnt lgkmcnt(0)")
    e(f"s_add_u32 s{S_TAG}, s{S_EP}, 1")
    l=g.label()
    e(f"s_cmp_lg_u32 s{S_W}, 0"); e(f"s_cbranch_scc1 {l}")
    e("s_getreg_b32 s16, hwreg(HW_REG_XCC_ID, 0, 4)")
    e("v_mov_b32 v26, s16"); e(f"v_mov_b32 v27, s{S_TAG}"); e("v_cmp_eq_u32 vcc, 0, v1"); e("v_cndmask_b32 v25, v17, 0, vcc")
    e(f"s_lshl_b32 s16, s{S_R}, 3")
    g.vissue(f"buffer_store_dwordx2 v[26:27], v25, s[4:7], s16 offen offset:{WS_XCC} sc1", False)
    e(f"{l}:")
    g.vwait(tsm)
    for b,src in ((0,20),(1,21)):
        e(f"v_lshlrev_b32 v26, 16, v{src}"); e(f"v_and_b32 v27, 0xffff0000, v{src}")
        for r in (26,27):
            e(f"v_mul_f32 v{r+2}, s30, v{r}"); e(f"v_exp_f32 v{r+2}, -v{r+2}"); e(f"v_add_f32 v{r+2}, 1.0, v{r+2}")
            e(f"v_rcp_f32 v{r+2}, v{r+2}"); e(f"v_mul_f32 v{r}, v{r}, v{r+2}")
        e(f"v_cvt_pk_bf16_f32 v{src}, v26, v27")
    e("s_mov_b64 exec, s[28:29]")
    l=g.label(); e(f"s_cbranch_execz {l}")
    e(f"ds_write_b32 v10, v20 offset:{SCB}"); e(f"ds_write_b32 v10, v21 offset:{SCB+1152}")
    e(f"{l}:"); e("s_mov_b64 exec, -1")
    e("v_lshlrev_b32 v230, 16, v230"); e("v_lshlrev_b32 v231, 16, v231"); e("v_lshlrev_b32 v232, 16, v232")
    def layernorm():
        e("v_readlane_b32 s72, v44, 0"); e("v_readlane_b32 s73, v44, 32")
        e("v_subrev_f32 v46, s72, v40"); e("v_subrev_f32 v47, s72, v41"); e("v_subrev_f32 v48, s73, v42"); e("v_subrev_f32 v49, s73, v43")
        for r in range(46,50): e(f"v_cndmask_b32 v{r}, 0, v{r}, s[28:29]")
        e("v_add_f32 v50, v46, v47"); e("v_add_f32 v51, v48, v49")
        e("v_mul_f32 v52, v46, v46"); e("v_mul_f32 v53, v48, v48"); e("v_fmac_f32 v52, v47, v47"); e("v_fmac_f32 v53, v49, v49")
        e("v_permlane32_swap_b32 v50, v51"); e("v_permlane32_swap_b32 v52, v53")
        e("v_add_f32 v50, v50, v51"); e("v_add_f32 v52, v52, v53")
        e("v_permlane16_swap_b32 v50, v52"); e("v_add_f32 v50, v50, v52")
        for m in ("quad_perm:[1,0,3,2]","quad_perm:[2,3,0,1]","row_half_mirror","row_mirror"):
            e(f"v_add_f32_dpp v50, v50, v50 {m} {DPP}")
        e(f"ds_write_b32 v238, v50 offset:{STAT}")
        e("s_waitcnt lgkmcnt(0)"); bar()
        e(f"ds_read_b128 v[52:55], v239 offset:{STAT}"); e(f"ds_read_b128 v[56:59], v239 offset:{STAT+16}")
        e("s_waitcnt lgkmcnt(0)")
        e("v_add_f32 v52, v52, v53"); e("v_add_f32 v54, v54, v55"); e("v_add_f32 v56, v56, v57"); e("v_add_f32 v58, v58, v59")
        e("v_add_f32 v52, v52, v54"); e("v_add_f32 v56, v56, v58"); e("v_add_f32 v52, v52, v56")
        e("v_mov_b32 v53, v52"); e("v_permlane16_swap_b32 v52, v53")
        e("v_mul_f32 v52, 0x3ae38e39, v52"); e("v_mul_f32 v53, 0x3ae38e39, v53")
        e("v_fma_f32 v53, -v52, v52, v53"); e("v_add_f32 v52, v44, v52")
        e("v_max_f32 v53, 0, v53")
        g.r2(52,53,54)
        e("v_add_f32 v53, 0x3727c5ac, v53"); g.r1(53)
        e("v_sqrt_f32 v53, v53"); g.r1(53)
        e("v_rcp_f32 v53, v53")
        e("v_readlane_b32 s72, v52, 0"); e("v_readlane_b32 s73, v52, 32"); e("v_readlane_b32 s74, v53, 0"); e("v_readlane_b32 s75, v53, 32")
        e("v_subrev_f32 v40, s72, v40"); e("v_subrev_f32 v41, s72, v41"); e("v_subrev_f32 v42, s73, v42"); e("v_subrev_f32 v43, s73, v43")
        g.r2(40,41,46); g.r2(42,43,47)
        e("v_mul_f32 v40, s74, v40"); e("v_mul_f32 v41, s74, v41"); e("v_mul_f32 v42, s75, v42"); e("v_mul_f32 v43, s75, v43")
        g.r2(40,41,46); g.r2(42,43,47)
    def modulate(c1_, s_):
        for k in range(4): e(f"v_mul_f32 v{40+k}, v{40+k}, v{c1_+k}")
        g.r2(40,41,46); g.r2(42,43,47)
        for k in range(4): e(f"v_add_f32 v{40+k}, v{40+k}, v{s_+k}")
        e("v_cvt_pk_bf16_f32 v46, v40, v41"); e("v_cvt_pk_bf16_f32 v47, v42, v43")
        e("s_mov_b64 exec, s[28:29]")
        l=g.label(); e(f"s_cbranch_execz {l}")
        e(f"ds_write_b32 v10, v46 offset:{HBUF}"); e(f"ds_write_b32 v10, v47 offset:{HBUF+1152}")
        e(f"{l}:"); e("s_mov_b64 exec, -1")
    def unpack_cs(gs, gc, c1_, s_):
        e(f"v_lshlrev_b32 v{s_}, 16, v{gs}"); e(f"v_lshlrev_b32 v{s_+1}, 16, v{gs+2}")
        e(f"v_and_b32 v{s_+2}, 0xffff0000, v{gs}"); e(f"v_and_b32 v{s_+3}, 0xffff0000, v{gs+2}")
        e(f"v_lshlrev_b32 v{c1_}, 16, v{gc}"); e(f"v_lshlrev_b32 v{c1_+1}, 16, v{gc+2}")
        e(f"v_and_b32 v{c1_+2}, 0xffff0000, v{gc}"); e(f"v_and_b32 v{c1_+3}, 0xffff0000, v{gc+2}")
        for k in range(4): e(f"v_add_f32 v{c1_+k}, 1.0, v{c1_+k}")
        g.r2(c1_,c1_+1,gs); g.r2(c1_+2,c1_+3,gs)
    def poll(loads, tagregs, mask=None, sleep=None, name="P"):
        l=g.label(name); d=g.label(name+"d")
        e(f"s_mov_b32 s{S_CNT}, 0")
        e(f"{l}:")
        for x in loads: g.vissue(x, False)
        e("s_waitcnt vmcnt(0)")
        for i,r in enumerate(tagregs):
            if i==0: e(f"v_cmp_ne_u32 vcc, s{S_TAG}, v{r}")
            else: e(f"v_cmp_ne_u32 s[22:23], s{S_TAG}, v{r}"); e("s_or_b64 vcc, vcc, s[22:23]")
        if mask: e(f"s_and_b64 vcc, vcc, {mask}")
        e(f"s_cbranch_vccz {d}")
        if sleep: e(f"s_sleep {sleep}")
        e(f"s_add_u32 s{S_CNT}, s{S_CNT}, 1"); e(f"s_cmp_lt_u32 s{S_CNT}, {POLL_MAX}"); e(f"s_cbranch_scc1 {l}")
        e(f"{d}:")
    e("v_lshrrev_b32 v25, 4, v1"); e("v_lshlrev_b32 v25, 5, v25"); e(f"v_add_u32 v239, {MISC}, v25")
    e(f"s_lshl_b32 s16, s{S_W}, 2"); e("v_add_u32 v238, s16, v239")
    e(f"s_mov_b32 s84, {WS_X1}"); e(f"s_mov_b32 s85, {WS_X1+4608}")
    e("v_and_b32 v25, 15, v1"); e("v_cmp_gt_u32 vcc, 16, v1"); e("v_cndmask_b32 v26, 1, 0, vcc")
    e("v_lshl_add_u32 v27, v26, 4, v25"); e("v_lshlrev_b32 v27, 2, v27"); e(f"v_add_u32 v233, {MISC}, v27")
    e("v_mul_u32_u24 v27, 384, v26"); e("v_lshrrev_b32 v26, 2, v25"); e("v_lshl_add_u32 v27, v26, 4, v27")
    e("v_and_b32 v26, 3, v25"); e("v_lshl_add_u32 v27, v26, 1, v27")
    e(f"s_lshr_b32 s16, s{S_W}, 1"); e("s_lshl_b32 s16, s16, 6"); e(f"s_and_b32 s17, s{S_W}, 1"); e("s_lshl_b32 s17, s17, 3"); e("s_add_u32 s16, s16, s17")
    e(f"s_add_u32 s16, s16, {MISC}"); e("v_add_u32 v252, s16, v27")
    e("v_bfe_u32 v25, v1, 1, 1"); e("v_lshlrev_b32 v25, 6, v25"); e("v_lshrrev_b32 v26, 4, v1"); e("v_lshl_add_u32 v25, v26, 4, v25"); e(f"v_add_u32 v253, {MISC}, v25")
    e("v_lshlrev_b32 v40, 16, v22"); e("v_and_b32 v41, 0xffff0000, v22"); e("v_lshlrev_b32 v42, 16, v23"); e("v_and_b32 v43, 0xffff0000, v23")
    e("v_lshlrev_b32 v44, 16, v24")
    layernorm()
    def consume_G(half, second):
        l=g.label()
        e(f"s_cmp_gt_u32 s{S_W}, 3"); e(f"s_cbranch_scc1 {l}")
        if second: e(f"s_cmp_lt_u32 s{S_R}, 10"); e(f"s_cbranch_scc1 {l}")
        trbase(6, half)
        for kb in range(18):
            bs=64+4*(kb%6); as_=96+4*(kb%6)
            tr(bs,14,kb*4096); tr(bs+2,14,kb*4096+2048)
            e(f"ds_read_b128 v[{as_}:{as_+3}], v8 offset:{SCB+kb*64}")
            if kb>=3:
                k=kb-3; e("s_waitcnt lgkmcnt(9)")
                e(f"v_mfma_f32_16x16x32_bf16 v[60:63], v[{96+4*(k%6)}:{99+4*(k%6)}], v[{64+4*(k%6)}:{67+4*(k%6)}], {'0' if k==0 else 'v[60:63]'}")
        for k in range(15,18):
            e(f"s_waitcnt lgkmcnt({3*(17-k)})")
            e(f"v_mfma_f32_16x16x32_bf16 v[60:63], v[{96+4*(k%6)}:{99+4*(k%6)}], v[{64+4*(k%6)}:{67+4*(k%6)}], v[60:63]")
        if second: e(f"s_add_u32 s16, s{S_R}, 22"); e("s_lshl_b32 s16, s16, 9")
        else: e(f"s_lshl_b32 s16, s{S_R}, 9")
        e(f"s_lshl_b32 s17, s{S_W}, 7"); e("s_add_u32 s16, s16, s17"); e(f"s_add_u32 s16, s16, {WS_MOD}")
        e("v_cvt_pk_bf16_f32 v60, v60, v62"); e(f"v_mov_b32 v61, s{S_TAG}")
        g.vissue("buffer_store_dwordx2 v[60:61], v12, s[4:7], s16 offen sc1", False)
        e(f"{l}:")
    g.vwait(c0); bar()
    g.stamp(1)
    consume_G(HA, False)
    e("s_waitcnt lgkmcnt(0)"); bar()
    c2=chunk_wq(HA,1)
    def consume_wq(half, hf):
        e(f"s_lshr_b32 s16, s{S_W}, 2"); e(f"s_mul_i32 s16, s16, {36*1024}")
        trbase(6, half, "s16")
        for kb in range(9):
            d=W1+4*(9*hf+kb); tr(d,14,kb*4096); tr(d+2,14,kb*4096+2048)
            if kb%4==3: e("s_waitcnt lgkmcnt(0)")
        e("s_waitcnt lgkmcnt(0)")
    g.vwait(c1); bar()
    consume_wq(HB,0); bar()
    l=g.label(); e(f"s_cmp_gt_u32 s{S_W}, 4"); e(f"s_cbranch_scc1 {l}")
    e(f"s_mov_b32 s16, {WS_MOD}"); e(f"s_mov_b32 s17, {WS_MOD+576*8}")
    poll(["buffer_load_dwordx4 v[16:19], v236, s[4:7], s16 offen sc1",
          "buffer_load_dwordx4 v[20:23], v236, s[4:7], s17 offen sc1"], [17,19,21,23], "s[28:29]", name="F1")
    g.stamp(2)
    unpack_cs(16,20,24,28)
    modulate(24,28)
    e(f"{l}:")
    c3=chunk_G(HB, True)
    g.vwait(c2); e("s_waitcnt lgkmcnt(0)"); bar()
    consume_wq(HA,1)
    for kb in range(18):
        as_=16+4*(kb%6)
        e(f"ds_read_b128 v[{as_}:{as_+3}], v8 offset:{HBUF+kb*64}")
        if kb>=3:
            k=kb-3; e("s_waitcnt lgkmcnt(3)")
            e(f"v_mfma_f32_16x16x32_bf16 v[60:63], v[{16+4*(k%6)}:{19+4*(k%6)}], v[{W1+4*k}:{W1+4*k+3}], {'0' if k==0 else 'v[60:63]'}")
    for k in range(15,18):
        e(f"s_waitcnt lgkmcnt({17-k})")
        e(f"v_mfma_f32_16x16x32_bf16 v[60:63], v[{16+4*(k%6)}:{19+4*(k%6)}], v[{W1+4*k}:{W1+4*k+3}], v[60:63]")
    e(f"s_lshl_b32 s16, s{S_R}, 10"); e(f"s_lshl_b32 s17, s{S_W}, 7"); e("s_add_u32 s16, s16, s17"); e(f"s_add_u32 s16, s16, {WS_Q}")
    e("v_cvt_pk_bf16_f32 v60, v60, v62"); e(f"v_mov_b32 v61, s{S_TAG}")
    g.vissue("buffer_store_dwordx2 v[60:61], v12, s[4:7], s16 offen sc1", False)
    g.stamp(3)
    bar()
    c4=chunk_1152(HA,S_WO,4096*1152,128,0)
    g.vwait(c3); bar()
    consume_G(HB, True)
    e("s_waitcnt lgkmcnt(0)"); bar()
    c5=chunk_1152(HB,S_WO,4096*1152,128,64)
    def consume_1152(half, hf, dst):
        e(f"s_lshr_b32 s16, s{S_W}, 2"); e("s_lshl_b32 s16, s16, 13")
        trbase(6, half, "s16")
        for i in range(5):
            if i==4:
                l=g.label(); e(f"s_cmp_gt_u32 s{S_W}, 3"); e(f"s_cbranch_scc1 {l}")
            for kl in range(2):
                d=dst+16*i+4*(2*hf+kl)
                tr(d,14,i*16384+kl*4096); tr(d+2,14,i*16384+kl*4096+2048)
            if i%2==1: e("s_waitcnt lgkmcnt(0)")
        e(f"{l}:")
        e("s_waitcnt lgkmcnt(0)")
    g.vwait(c4); bar(); consume_1152(HA,0,WO); bar()
    c6=chunk_w1(HA,0)
    g.vwait(c5); bar(); consume_1152(HB,1,WO); bar()
    c7=chunk_w1(HB,1)
    def consume_w1(half, cc):
        e(f"s_lshl_b32 s16, s{S_W}, 5")
        trbase(7, half, "s16")
        for kl in range(6):
            d=W1+4*(6*cc+kl); tr(d,14,kl*9216); tr(d+2,14,kl*9216+4608)
        e("s_waitcnt lgkmcnt(0)")
        for w in range(4,8):
            its=[(i,(w-4)+4*i) for i in range(5) if 6*cc<=(w-4)+4*i<6*cc+6]
            l=g.label(); e(f"s_cmp_lg_u32 s{S_W}, {w}"); e(f"s_cbranch_scc1 {l}")
            for i,kb in its:
                d=w1x(i); o=(kb-6*cc)*9216+(8-w)*32
                tr(d,14,o); tr(d+2,14,o+4608)
            e(f"{l}:")
        e("s_waitcnt lgkmcnt(0)")
    g.vwait(c6); bar(); consume_w1(HA,0); bar()
    c8=chunk_w1(HA,2)
    g.vwait(c7); bar(); consume_w1(HB,1); bar()
    c9=chunk_w2h(HB)
    g.vwait(c8); bar(); consume_w1(HA,2); bar()
    c10=chunk_1152(HA,S_W2,4608*1152,144,0)
    g.vwait(c9); bar()
    e(f"s_lshr_b32 s16, s{S_W}, 2"); e("s_lshl_b32 s16, s16, 11")
    trbase(6, HB, "s16")
    for i in range(5):
        if i==4:
            l=g.label(); e(f"s_cmp_gt_u32 s{S_W}, 3"); e(f"s_cbranch_scc1 {l}")
        tr(W2H+2*i,14,i*4096)
    e(f"{l}:"); e("s_waitcnt lgkmcnt(0)"); bar()
    c11=chunk_1152(HB,S_W2,4608*1152,144,64)
    g.stamp(4)
    e("v_cmp_gt_u32 s[24:25], 32, v1"); e("v_lshlrev_b32 v16, 3, v1")
    poll([f"buffer_load_dwordx2 v[18:19], v16, s[4:7], 0 offen offset:{WS_XCC} sc1"], [19], "s[24:25]", name="XC")
    e("v_readfirstlane_b32 s16, v18"); e("v_cmp_ne_u32 vcc, s16, v18"); e("s_and_b64 vcc, vcc, s[24:25]")
    e("s_cmp_eq_u64 vcc, 0"); e(f"s_cselect_b32 s{S_FAST}, {0 if cfg.get('noFast') else 1}, 0")
    l=g.label(); e(f"s_cmp_gt_u32 s{S_W}, 4"); e(f"s_cbranch_scc1 {l}")
    e(f"s_mov_b32 s16, {WS_MOD+3*576*8}"); e(f"s_mov_b32 s17, {WS_MOD+4*576*8}")
    poll(["buffer_load_dwordx4 v[16:19], v236, s[4:7], s16 offen sc1",
          "buffer_load_dwordx4 v[20:23], v236, s[4:7], s17 offen sc1"], [17,19,21,23], "s[28:29]", name="M2")
    unpack_cs(16,20,240,244)
    e(f"{l}:")
    l=g.label(); e(f"s_cmp_lg_u32 s{S_W}, 0"); e(f"s_cbranch_scc1 {l}"); e(f"s_cmp_gt_u32 s{S_R}, 17"); e(f"s_cbranch_scc1 {l}")
    e("v_and_b32 v16, 31, v1"); e("v_lshlrev_b32 v16, 3, v16"); e(f"s_lshl_b32 s16, s{S_R}, 8")
    e(f"s_add_u32 s17, s16, {WS_MOD+5*576*8}"); e(f"s_add_u32 s16, s16, {WS_MOD+2*576*8}")
    poll(["buffer_load_dwordx2 v[18:19], v16, s[4:7], s16 offen sc1",
          "buffer_load_dwordx2 v[20:21], v16, s[4:7], s17 offen sc1"], [19,21], name="M3")
    e("v_cmp_gt_u32 vcc, 32, v1")
    e("v_lshlrev_b32 v16, 16, v18"); e("v_and_b32 v17, 0xffff0000, v18"); e("v_cndmask_b32 v248, v17, v16, vcc")
    e("v_lshlrev_b32 v16, 16, v20"); e("v_and_b32 v17, 0xffff0000, v20"); e("v_cndmask_b32 v249, v17, v16, vcc")
    e(f"{l}:")
    lE=g.label("E1skip"); e(f"s_cmp_gt_u32 s{S_W}, 1"); e(f"s_cbranch_scc1 {lE}")
    e("v_cmp_gt_u32 s[24:25], 7, v1")
    e(f"s_lshl_b32 s16, s{S_W}, 5"); e(f"s_add_u32 s16, s16, s{S_R}")
    e("s_lshl_b32 s17, s16, 7"); e(f"s_add_u32 s17, s17, {WS_ML}")
    e(f"v_mov_b32 v17, {OOB}"); e("v_cndmask_b32 v16, v17, v237, s[24:25]")
    poll(["buffer_load_dwordx4 v[20:23], v16, s[4:7], s17 offen sc1"], [21,23], "s[24:25]", sleep=8, name="ML")
    e("v_mov_b32 v17, 0xff800000"); e("v_cndmask_b32 v20, v17, v20, s[24:25]")
    e("v_mov_b32 v24, v20")
    for m in ("quad_perm:[1,0,3,2]","quad_perm:[2,3,0,1]","row_half_mirror"):
        e(f"v_max_f32_dpp v24, v24, v24 {m} {DPP}")
    e("v_sub_f32 v20, v20, v24"); e("v_mul_f32 v20, s30, v20"); e("v_exp_f32 v20, v20")
    e("v_mul_f32 v24, v20, v22"); e("v_cndmask_b32 v24, 0, v24, s[24:25]")
    for m in ("quad_perm:[1,0,3,2]","quad_perm:[2,3,0,1]","row_half_mirror"):
        e(f"v_add_f32_dpp v24, v24, v24 {m} {DPP}")
    e("v_rcp_f32 v24, v24"); e("v_mul_f32 v20, v20, v24")
    for j in range(7): e(f"v_readlane_b32 s{76+j}, v20, {j}")
    g.stamp(5)
    e("s_lshl_b32 s16, s16, 13"); e(f"s_add_u32 s16, s16, {WS_E1}"); e("s_add_u32 s17, s16, 4096")
    e("s_mov_b32 s20, 0x7f"); e(f"s_mov_b32 s{S_CNT}, 0")
    e("L_e1:")
    for j in range(7):
        l=g.label(); e(f"s_bitcmp0_b32 s20, {j}"); e(f"s_cbranch_scc1 {l}")
        g.vissue(f"buffer_load_dwordx4 v[{16+4*j}:{19+4*j}], v237, s[4:7], s{16 if j<4 else 17} offen offset:{(j%4)*1024} sc1", False)
        e(f"{l}:")
    e("s_waitcnt vmcnt(0)")
    for j in range(7):
        e(f"v_cmp_ne_u32 vcc, s{S_TAG}, v{17+4*j}"); e(f"v_cmp_ne_u32 s[22:23], s{S_TAG}, v{19+4*j}"); e("s_or_b64 vcc, vcc, s[22:23]")
        e("s_cmp_eq_u64 vcc, 0"); e(f"s_cselect_b32 s21, {0xffffffff ^ (1<<j)}, -1"); e("s_and_b32 s20, s20, s21")
    e("s_cmp_eq_u32 s20, 0"); e("s_cbranch_scc1 L_e1d")
    if cfg.get('e1sleep',1): e(f"s_sleep {cfg.get('e1sleep',1)}")
    e(f"s_add_u32 s{S_CNT}, s{S_CNT}, 1"); e(f"s_cmp_lt_u32 s{S_CNT}, {POLL_MAX}"); e("s_cbranch_scc1 L_e1")
    e("L_e1d:")
    g.stamp(6)
    e("v_mul_f32 v44, s76, v16"); e("v_mul_f32 v45, s76, v18")
    for j in range(1,7):
        e(f"v_fmac_f32 v44, s{76+j}, v{16+4*j}"); e(f"v_fmac_f32 v45, s{76+j}, v{18+4*j}")
    e("v_cvt_pk_bf16_f32 v44, v44, v45")
    e(f"s_lshl_b32 s16, s{S_W}, 7"); e("v_add_u32 v45, s16, v10")
    e(f"ds_write_b32 v45, v44 offset:{OB}")
    e(f"{lE}:")
    e(f"s_lshr_b32 s16, s{S_W}, 1"); e("s_lshl_b32 s16, s16, 14"); e(f"s_and_b32 s17, s{S_W}, 1"); e("s_lshl_b32 s17, s17, 8"); e("s_add_u32 s16, s16, s17")
    e(f"s_lshl_b32 s17, s{S_R}, 9"); e("s_add_u32 s31, s16, s17")
    e("s_waitcnt vmcnt(0) lgkmcnt(0)"); bar()
    def pub_store(txt):
        a=g.label(); b=g.label()
        e(f"s_cmp_eq_u32 s{S_FAST}, 0"); e(f"s_cbranch_scc1 {a}")
        g.vissue(txt, False); e(f"s_branch {b}")
        e(f"{a}:"); g.vissue(txt+" sc1", False); e(f"{b}:")
    def gemv_out(abuf, wreg, area, extra=None):
        for kb in range(4): e(f"ds_read_b128 v[{16+4*kb}:{19+4*kb}], v9 offset:{abuf+kb*64}")
        if extra: extra[0]()
        e("s_waitcnt lgkmcnt(0)")
        ls=g.label()
        for i in range(5):
            if i==4: e(f"s_cmp_gt_u32 s{S_W}, 3"); e(f"s_cbranch_scc1 {ls}")
            d=40+4*i
            for kb in range(4):
                e(f"v_mfma_f32_16x16x32_bf16 v[{d}:{d+3}], v[{16+4*kb}:{19+4*kb}], v[{wreg+16*i+4*kb}:{wreg+16*i+4*kb+3}], {'0' if kb==0 else f'v[{d}:{d+3}]'}")
            if extra and i==0: extra[1]()
            if not extra and i>=1: store_tile(i-1, area)
        if not extra: store_tile(4, area); e(f"s_branch {ls}x")
        e(f"{ls}:")
        if not extra: store_tile(3, area); e(f"{ls}x:")
        if extra:
            ls=g.label()
            for i in range(5):
                if i==4: e(f"s_cmp_gt_u32 s{S_W}, 3"); e(f"s_cbranch_scc1 {ls}")
                d=40+4*i
                e(f"v_mfma_f32_16x16x16_bf16 v[{d}:{d+3}], v[60:61], v[{W2H+2*i}:{W2H+2*i+1}], v[{d}:{d+3}]")
            store_tile(4, area)
            e(f"{ls}:")
            for i in range(4): store_tile(i, area)
    def store_tile(i, area):
        d=40+4*i
        e(f"s_add_u32 s16, s31, {area+i*65536}")
        e(f"v_mov_b32 v{d+1}, s{S_TAG}"); e(f"v_mov_b32 v{d+3}, s{S_TAG}")
        pub_store(f"buffer_store_dwordx4 v[{d}:{d+3}], v11, s[4:7], s16 offen")
    gemv_out(OB, WO, WS_E2A)
    g.stamp(7)
    consume_1152(HA,0,WO); consume_1152(HB,1,WO)
    def gather_reduce(area, name):
        e(f"s_lshl_b32 s16, s{S_R}, 14"); e(f"s_lshl_b32 s17, s{S_W}, 11"); e("s_add_u32 s16, s16, s17"); e(f"s_add_u32 s16, s16, {area}")
        poll(["buffer_load_dwordx4 v[16:19], v237, s[4:7], s16 offen sc1",
              "buffer_load_dwordx4 v[20:23], v237, s[4:7], s16 offen offset:1024 sc1"], [17,19,21,23], name=name)
        e("v_add_f32 v16, v16, v20"); e("v_add_f32 v18, v18, v22")
        e("v_permlane32_swap_b32 v16, v18"); e("v_add_f32 v16, v16, v18")
        e(f"ds_write_b32 v250, v16 offset:{TRED}")
        e("s_waitcnt lgkmcnt(0)"); bar()
    e(f"s_lshl_b32 s16, s{S_W}, 8"); e("v_lshlrev_b32 v251, 2, v1"); e(f"v_add_u32 v251, {MISC}, v251"); e("v_add_u32 v250, s16, v251")
    def final_sum():
        for k in range(4): e(f"ds_read2st64_b32 v[{16+2*k}:{17+2*k}], v251 offset0:{TRED//256+2*k} offset1:{TRED//256+2*k+1}")
        e("s_waitcnt lgkmcnt(0)")
        e("v_add_f32 v16, v16, v17"); e("v_add_f32 v18, v18, v19"); e("v_add_f32 v20, v20, v21"); e("v_add_f32 v22, v22, v23")
        e("v_add_f32 v16, v16, v18"); e("v_add_f32 v20, v20, v22"); e("v_add_f32 v16, v16, v20")
        g.r1(16)
    l=g.label(); e(f"s_cmp_gt_u32 s{S_R}, 17"); e(f"s_cbranch_scc1 {l}")
    gather_reduce(WS_E2A,"E2A")
    e(f"s_cmp_lg_u32 s{S_W}, 0"); e(f"s_cbranch_scc1 {l}")
    final_sum()
    e("v_mul_f32 v16, v248, v16"); g.r1(16)
    e("v_add_f32 v230, v230, v16"); g.r1(230)
    e("v_mov_b32 v16, v230"); e(f"v_mov_b32 v17, s{S_TAG}")
    e("v_lshlrev_b32 v18, 2, v13")
    pub_store(f"buffer_store_dwordx2 v[16:17], v18, s[4:7], s84 offen")
    e(f"{l}:")
    g.stamp(8)
    e("v_lshrrev_b32 v24, 5, v1"); e("v_mul_u32_u24 v24, 4608, v24")
    l=g.label(); e(f"s_cmp_gt_u32 s{S_W}, 4"); e(f"s_cbranch_scc1 {l}")
    lp=g.label("E2B"); ld=g.label("E2Bd")
    e(f"s_mov_b32 s{S_CNT}, 0"); e(f"{lp}:")
    g.vissue("buffer_load_dwordx4 v[16:19], v236, s[4:7], s84 offen sc1", False)
    g.vissue("buffer_load_dwordx4 v[20:23], v236, s[4:7], s85 offen sc1", False)
    g.vissue("buffer_load_dwordx2 v[26:27], v24, s[4:7], s84 offen sc1", False)
    e("s_waitcnt vmcnt(0)")
    e(f"v_cmp_ne_u32 vcc, s{S_TAG}, v17")
    for r in (19,21,23): e(f"v_cmp_ne_u32 s[22:23], s{S_TAG}, v{r}"); e("s_or_b64 vcc, vcc, s[22:23]")
    e("s_and_b64 vcc, vcc, s[28:29]")
    e(f"v_cmp_ne_u32 s[22:23], s{S_TAG}, v27"); e("s_or_b64 vcc, vcc, s[22:23]")
    e(f"s_cbranch_vccz {ld}")
    e(f"s_add_u32 s{S_CNT}, s{S_CNT}, 1"); e(f"s_cmp_lt_u32 s{S_CNT}, {POLL_MAX}"); e(f"s_cbranch_scc1 {lp}")
    e(f"{ld}:"); e(f"{l}:")
    g.stamp(9)
    e("v_mov_b32 v40, v16"); e("v_mov_b32 v41, v18"); e("v_mov_b32 v42, v20"); e("v_mov_b32 v43, v22"); e("v_mov_b32 v44, v26")
    layernorm()
    modulate(240,244)
    e("s_waitcnt lgkmcnt(0)"); bar()
    g.stamp(10)
    lend=g.label("W1e")
    def w1_body(w):
        xs={ (w-4)+4*i:i for i in range(5) if (w-4)+4*i<18 } if w is not None else {}
        first=[True]
        def mm(k):
            a=16+4*(k%6)
            e(f"v_mfma_f32_16x16x32_bf16 v[60:63], v[{a}:{a+3}], v[{W1+4*k}:{W1+4*k+3}], {'0' if k==0 else 'v[60:63]'}")
            if k in xs:
                d=w1x(xs[k])
                e(f"v_mfma_f32_16x16x32_bf16 v[56:59], v[{a}:{a+3}], v[{d}:{d+3}], {'0' if first[0] else 'v[56:59]'}"); first[0]=False
        for kb in range(18):
            as_=16+4*(kb%6)
            e(f"ds_read_b128 v[{as_}:{as_+3}], v8 offset:{HBUF+kb*64}")
            if kb>=3: e("s_waitcnt lgkmcnt(3)"); mm(kb-3)
        for k in range(15,18): e(f"s_waitcnt lgkmcnt({17-k})"); mm(k)
        if w is not None:
            e("v_cndmask_b32 v56, v58, v56, s[86:87]")
            e(f"ds_write_b32 v233, v56 offset:{W1XP+(w-4)*128}")
    e("v_cmp_gt_u32 s[86:87], 16, v1")
    for w in range(4,8):
        l=g.label(); e(f"s_cmp_lg_u32 s{S_W}, {w}"); e(f"s_cbranch_scc1 {l}")
        e("s_nop 0")
        w1_body(w); e(f"s_branch {lend}"); e(f"{l}:")
    w1_body(None)
    e(f"{lend}:")
    e("v_cndmask_b32 v60, v62, v60, s[86:87]")
    g.r1(60); e("v_add_f32 v60, v60, v232"); g.r1(60); e("v_max_f32 v60, 0, v60"); e("v_mul_f32 v60, v60, v60")
    e("v_cvt_pk_bf16_f32 v60, v60, v60")
    e(f"ds_write_b16 v252, v60 offset:{HIDB}")
    e("s_waitcnt lgkmcnt(0)"); bar()
    g.stamp(11)
    def ex0():
        for p in range(4): e(f"ds_read_b128 v[{W1+4*p}:{W1+4*p+3}], v253 offset:{W1XP+p*128}")
    def ex1():
        t=W1
        for k in range(4): e(f"v_add_f32 v{t+k}, v{t+k}, v{t+4+k}"); e(f"v_add_f32 v{t+8+k}, v{t+8+k}, v{t+12+k}")
        for k in range(4): e(f"v_add_f32 v{t+k}, v{t+k}, v{t+8+k}")
        g.r2(t,t+1,t+4); g.r2(t+2,t+3,t+5)
        e(f"v_lshlrev_b32 v{t+4}, 16, v234"); e(f"v_and_b32 v{t+5}, 0xffff0000, v234"); e(f"v_lshlrev_b32 v{t+6}, 16, v235"); e(f"v_and_b32 v{t+7}, 0xffff0000, v235")
        for k in range(4): e(f"v_add_f32 v{t+k}, v{t+k}, v{t+4+k}")
        g.r2(t,t+1,t+4); g.r2(t+2,t+3,t+5)
        for k in range(4): e(f"v_max_f32 v{t+k}, 0, v{t+k}"); e(f"v_mul_f32 v{t+k}, v{t+k}, v{t+k}")
        e(f"v_cvt_pk_bf16_f32 v60, v{t}, v{t+1}"); e(f"v_cvt_pk_bf16_f32 v61, v{t+2}, v{t+3}")
    gemv_out(HIDB, WO, WS_E3, (ex0,ex1))
    g.stamp(12)
    e(f"s_cmp_gt_u32 s{S_R}, 17"); e("s_cbranch_scc1 L_end")
    gather_reduce(WS_E3,"E3")
    e(f"s_cmp_lg_u32 s{S_W}, 0"); e("s_cbranch_scc1 L_end")
    final_sum()
    e("v_add_f32 v16, v16, v231"); g.r1(16)
    e("v_mul_f32 v16, v249, v16"); g.r1(16)
    e("v_add_f32 v16, v230, v16"); e("v_cvt_pk_bf16_f32 v16, v16, v16")
    g.srd(12,S_OUT,2304)
    e("buffer_store_short v16, v13, s[12:15], 0 offen")
    g.stamp(13)
    e(f"s_cmp_lg_u32 s{S_R}, 0"); e("s_cbranch_scc1 L_end")
    e(f"v_mov_b32 v17, {OOB}"); e("v_cmp_eq_u32 vcc, 0, v1"); e("v_cndmask_b32 v17, v17, 0, vcc"); e(f"v_mov_b32 v18, s{S_TAG}")
    e(f"buffer_store_dword v18, v17, s[4:7], 0 offen offset:{WS_EPOCH} sc1")
    if cfg.get('dbgtime'):
        g.srd(12,S_DBG,256)
        for k in range(7):
            e(f"s_sub_u32 s70, s{88+k}, s95"); e("v_mov_b32 v18, s70"); e(f"buffer_store_dword v18, v17, s[12:15], 0 offen offset:{4*k}")

def build(cfg):
    g=G(cfg)
    prologue(g); stream(g); tail(g)
    g.e("L_end:"); g.e("s_endpgm")
    body,n=fix_hazards(g.L)
    H=[f"; @launch grid=(256,1,1) block=(512,1,1) lds={LDS_BYTES}",
       '.amdgcn_target "amdgcn-amd-amdhsa--gfx950"', ".text", f".globl {KN}_kernel", ".p2align 8", f".type {KN}_kernel,@function", f"{KN}_kernel:"]
    T=['.section .rodata,"a"', ".p2align 6", f".amdhsa_kernel {KN}_kernel", "  .amdhsa_next_free_vgpr 256", "  .amdhsa_next_free_sgpr 96",
       "  .amdhsa_accum_offset 256", "  .amdhsa_group_segment_fixed_size 0", "  .amdhsa_kernarg_size 120", "  .amdhsa_user_sgpr_count 2",
       "  .amdhsa_user_sgpr_kernarg_segment_ptr 1", "  .amdhsa_system_sgpr_workgroup_id_x 1", ".end_amdhsa_kernel"]
    return "\n".join(H+body+T)+"\n", n
if __name__=="__main__":
    import json
    out=sys.argv[1]; cfg=json.loads(sys.argv[2]) if len(sys.argv)>2 else {}
    s,n=build(cfg); open(out,"w").write(s); print(out,"nops inserted",n,"lines",s.count("\n"))
```

```python
import re
TRANS = ("v_exp_f32","v_log_f32","v_rcp_f32","v_rsq_f32","v_sqrt_f32","v_sin_f32","v_cos_f32")
def parse_regs(tok):
    tok = tok.strip()
    tok = tok.lstrip('-')
    if tok.startswith('abs(') or tok.startswith('|'):
        tok = tok.replace('abs(','').replace(')','').replace('|','')
    m = re.fullmatch(r'([vs])\[(\d+):(\d+)\]', tok)
    if m: return {(m.group(1), i) for i in range(int(m.group(2)), int(m.group(3))+1)}
    m = re.fullmatch(r'([vs])(\d+)', tok)
    if m: return {(m.group(1), int(m.group(2)))}
    if tok == 'vcc': return {('s',106),('s',107)}
    if tok == 'vcc_lo': return {('s',106)}
    if tok == 'vcc_hi': return {('s',107)}
    if tok == 'm0': return {('s',124)}
    if tok == 'exec': return {('s',126),('s',127)}
    return set()

class Ins:
    def __init__(self, text):
        self.text = text
        t = text.split(';')[0].strip()
        self.label = t.endswith(':')
        self.directive = t.startswith('.')
        self.op = ''
        self.dst=set(); self.src=set(); self.srcC=set(); self.srcAB=set(); self.stdata=set()
        self.kind='other'
        if self.label or self.directive or not t: return
        parts = t.split(None,1)
        op = parts[0]; self.op = op
        rest = parts[1] if len(parts)>1 else ''
        ops = [o.strip() for o in rest.split(',')] if rest else []
        fixed=[]; depth=0; cur=''
        for ch in rest:
            if ch=='[': depth+=1
            if ch==']': depth-=1
            if ch==',' and depth==0:
                fixed.append(cur.strip()); cur=''
            else: cur+=ch
        if cur.strip(): fixed.append(cur.strip())
        ops=[]
        mods=[]
        for i,o in enumerate(fixed):
            w=o.split()
            ops.append(w[0]); mods+=w[1:]
        self.mods=mods; self.ops=ops
        R=[parse_regs(o) for o in ops]
        self.dpp = op.endswith('_dpp')
        if op.startswith('v_mfma'):
            self.kind='mfma'; self.dst=R[0]; self.srcAB=R[1]|R[2]; self.srcC=R[3]; self.src=self.srcAB|self.srcC
        elif op.startswith('v_cmp'):
            self.kind='valu'; self.dst=R[0]; self.src=set().union(*R[1:])
        elif op.startswith('v_readlane') or op.startswith('v_readfirstlane'):
            self.kind='valu'; self.dst=R[0]; self.src=set().union(*R[1:]); self.rl=True
        elif op.startswith('v_permlane'):
            self.kind='valu'; self.dst=R[0]|R[1]; self.src=R[0]|R[1]; self.perml=True
        elif op.startswith('v_'):
            self.kind='valu'; self.dst=R[0]; self.src=set().union(*R[1:]) if len(R)>1 else set()
            if op.startswith(('v_fmac','v_dot2c','v_writelane')) : self.src|=R[0]
            if op.startswith('v_cndmask') and len(ops)==3: self.src|=parse_regs('vcc')
            if self.dpp: self.src|=R[0]
            if op.startswith(('v_add_co','v_sub_co','v_addc_co')): self.dst|=R[1]
        elif op.startswith('ds_read') or op.startswith('ds_bpermute') or op.startswith('ds_swizzle'):
            self.kind='ds'; self.dst=R[0]; self.src=set().union(*R[1:])
        elif op.startswith('ds_'):
            self.kind='ds'; self.src=set().union(*R)
        elif op.startswith('buffer_load') or op.startswith('global_load'):
            self.kind='vmem'
            if 'lds' in mods: self.src=set().union(*R)|parse_regs('m0'); self.dma=True
            else: self.dst=R[0]; self.src=set().union(*R[1:])
        elif op.startswith('buffer_store') or op.startswith('global_store') or op.startswith('buffer_atomic'):
            self.kind='vmem'; self.src=set().union(*R)
            if 'x4' in op or 'x3' in op: self.stdata = R[0] if op.startswith('buffer') else R[1]
        elif op.startswith('s_'):
            self.kind='salu'
            if op.startswith(('s_cmp','s_cbranch','s_branch','s_waitcnt','s_nop','s_barrier','s_sleep','s_endpgm','s_bitcmp','s_setprio','s_setpc')):
                self.src=set().union(*R) if R else set()
            else:
                self.dst=R[0] if R else set(); self.src=set().union(*R[1:]) if len(R)>1 else set()
                if 'saveexec' in op: self.dst|=parse_regs('exec')
        self.trans = op.replace('_e32','').replace('_e64','') in TRANS
    def ws(self):
        if self.label or self.directive or not self.op: return 0
        if self.op=='s_nop': return int(self.ops[0],0)+1
        return 1

def need(p, c):
    n=0
    pv={r for r in p.dst if r[0]=='v'}; ps={r for r in p.dst if r[0]=='s'}
    if p.kind=='valu':
        if c.kind=='mfma' and pv & c.src: n=max(n,2)
        if c.kind=='valu':
            if getattr(c,'dpp',False) and pv & c.src: n=max(n,2)
            if getattr(c,'perml',False) and pv & c.src: n=max(n,2)
            if getattr(c,'rl',False) and pv & c.src: n=max(n,1)
            if ps & c.src: n=max(n, 4 if getattr(c,'rl',False) else 2)
        if p.trans and pv & c.src and c.kind in('valu','ds','vmem','mfma'): n=max(n,1)
        if c.kind=='vmem' and ps & c.src: n=max(n,5)
        if c.kind=='salu' and ps & c.src: n=max(n,1)
    if p.kind=='mfma':
        if c.kind=='mfma':
            if pv & c.srcAB: n=max(n,8)
            if pv & c.srcC and not (c.srcC==p.dst and c.op==p.op): n=max(n,6)
            if pv & c.dst and not (c.srcC==p.dst and c.op==p.op): n=max(n,6)
        elif c.kind in('valu','ds','vmem'):
            if pv & (c.src|c.dst): n=max(n,8)
        if c.kind=='valu' and p.srcC & c.dst: n=max(n,3)
    if p.kind=='salu':
        if getattr(c,'dma',False) and ('s',124) in p.dst: n=max(n,1)
    if p.kind=='vmem' and p.stdata:
        if c.kind in ('valu','mfma') and p.stdata & c.dst: n=max(n,2)
        elif p.stdata & c.dst: n=max(n,1)
    return n

def fix_hazards(lines):
    ins=[Ins(l) for l in lines]
    for c in ins:
        for m in getattr(c,'mods',[]):
            mm=re.fullmatch(r'offset:(\d+)',m)
            if mm:
                v=int(mm.group(1))
                lim=4095 if c.kind=='vmem' else 65535
                assert v<=lim, c.text
            mm=re.fullmatch(r'offset[01]:(\d+)',m)
            if mm: assert int(mm.group(1))<=255, c.text
    br={}
    raw=[]
    for c in ins:
        if c.op:
            raw.append(c)
            if c.op.startswith('s_cbranch') or c.op=='s_branch':
                br.setdefault(c.ops[0],[]).append(raw[-12:])
    out=[]; hists=[[]]; nins=0
    for ln,c in zip(lines,ins):
        if c.label:
            name=ln.split(';')[0].strip()[:-1]
            for h in br.get(name,[]): hists.append(list(h))
        if c.op:
            req=0
            for hist in hists:
                dist=0
                for p in reversed(hist):
                    k=need(p,c)
                    if k>dist: req=max(req,k-dist)
                    dist+=p.ws()
                    if dist>=8: break
            while req>0:
                k=min(req,16)
                nop=Ins(f"s_nop {k-1}"); out.append(f"s_nop {k-1}")
                for hist in hists: hist.append(nop)
                req-=k; nins+=1
            for hist in hists: hist.append(c)
            if c.op in('s_branch','s_endpgm','s_setpc_b64'): hists=[[]]
            nh=[]
            for hist in hists:
                h=hist[-12:]
                if not any(len(o)==len(h) and all(a is b for a,b in zip(o,h)) for o in nh): nh.append(h)
            hists=nh
        out.append(ln)
    return out, nins

def check_scoreboard(lines):
    ins=[Ins(l) for l in lines]
    errs=set()
    def merge(a,b):
        if a is None: return dict(b)
        r=dict(a)
        for k,v in b.items():
            r[k]=min(r[k],v) if k in r else v
        return r
    pend={}
    ret={}
    callsite={}
    for p in range(4):
        st={}; alive=True; curcallee=None
        for idx,(ln,c) in enumerate(zip(lines,ins)):
            if c.label:
                name=ln.split(';')[0].strip()[:-1]
                if name in pend:
                    st=merge(st if alive else None, pend[name]); alive=True
                continue
            if not c.op or not alive:
                if not alive and c.op: pass
                if not alive: continue
                continue
            cls={'vmem':'vm','ds':'lg'}.get(c.kind)
            if c.op.startswith(('s_load','s_memrealtime','s_memtime')): cls='sm'
            used=c.src|c.dst|c.srcC|c.srcAB
            for (i,kc),cnt in st.items():
                o=ins[i]
                ov=o.dst & used
                if ov:
                    if cls==kc and kc in('vm','lg') and not (o.dst & c.src): continue
                    errs.add((idx,i))
            if c.op=='s_waitcnt':
                t=c.text
                m=re.search(r'vmcnt\((\d+)\)',t)
                if m:
                    n=int(m.group(1)); st={k:v for k,v in st.items() if not(k[1]=='vm' and v>=n)}
                m=re.search(r'lgkmcnt\((\d+)\)',t)
                if m:
                    n=int(m.group(1))
                    has_sm=any(k[1]=='sm' for k in st)
                    if n==0: st={k:v for k,v in st.items() if k[1] not in('lg','sm')}
                    elif not has_sm: st={k:v for k,v in st.items() if not(k[1]=='lg' and v>=n)}
            if cls:
                grp=('vm',) if cls=='vm' else ('lg','sm')
                st={k:(v+1 if k[1] in grp else v) for k,v in st.items()}
                if c.dst or cls=='sm':
                    st[(idx,cls)]=0
            if c.op.startswith('s_cbranch'):
                pend[c.ops[0]]=merge(pend.get(c.ops[0]),st)
            elif c.op=='s_branch':
                pend[c.ops[0]]=merge(pend.get(c.ops[0]),st); alive=False
            elif c.op=='s_call_b64':
                pend[c.ops[1]]=merge(pend.get(c.ops[1]),st)
                if 'ret' in ret: st=dict(ret['ret'])
            elif c.op=='s_setpc_b64':
                ret['ret']=merge(ret.get('ret'),st); alive=False
            elif c.op=='s_endpgm': alive=False
    return sorted((lines[a],lines[b],a,b) for a,b in errs)
```

```python
import sys
from asmlib import fix_hazards
KN = "adaLN_cond__gqa_block_cached__dense_activation_squared_relu__decode"

WS_EPOCH=0; WS_XCC=0x100; WS_MOD=0x1000; WS_Q=0x8000; WS_ML=0x10000; WS_X1=0x12000
WS_E2A=0x20000; WS_E3=0x70000; WS_E1=0xC0000; WS_STAMP=0x200000; WS_SIZE=0x400000
OOB=0x80000000
POLL_MAX=1<<18
NG1=22

class G:
    def __init__(s, cfg):
        s.L=[]; s.cfg=cfg; s.vm=0; s.lab=0; s.intail=False
    def e(s, x): s.L.append(x)
    def label(s, p="L"):
        s.lab+=1; return f"{p}_{s.lab}"
    def vissue(s, txt, counted=True):
        s.e(txt)
        if counted:
            s.vm+=1; return s.vm
        return None
    def vwait(s, tok):
        n=s.vm-tok
        assert 0<=n<=63, n
        s.e(f"s_waitcnt vmcnt({n})")
    def srd(s, d, ptr, nbytes):
        s.e(f"s_mov_b32 s{d}, s{ptr}"); s.e(f"s_mov_b32 s{d+1}, s{ptr+1}")
        s.e(f"s_mov_b32 s{d+2}, {nbytes}"); s.e(f"s_mov_b32 s{d+3}, 0x20000")
    def stamp(s, idx):
        if s.cfg.get('dbgtime') and s.intail:
            m={3:96,6:97,13:98}
            if idx in m:
                s.e("s_memrealtime s[70:71]"); s.e("s_waitcnt lgkmcnt(0)"); s.e(f"s_mov_b32 s{m[idx]}, s70")
            return
        if not s.cfg.get('stamp'): return
        s.e("s_memrealtime s[70:71]"); s.e("s_waitcnt lgkmcnt(0)")
        s.e(f"v_mov_b32 v{s.stv}, s70")
        s.e(f"buffer_store_dword v{s.stv}, v{s.stv+1}, s[4:7], 0 offen offset:{idx*4}")
    def r2(s, a, b, t):
        s.e(f"v_cvt_pk_bf16_f32 v{t}, v{a}, v{b}")
        s.e(f"v_lshlrev_b32 v{a}, 16, v{t}")
        s.e(f"v_and_b32 v{b}, 0xffff0000, v{t}")
    def r1(s, a):
        s.e(f"v_cvt_pk_bf16_f32 v{a}, v{a}, v{a}")
        s.e(f"v_and_b32 v{a}, 0xffff0000, v{a}")

S_X,S_K,S_V,S_WQ,S_WO,S_W1,S_B1,S_W2,S_B2,S_C,S_WM,S_OUT,S_DBG,S_WS = 32,34,36,38,40,44,46,48,50,52,54,56,58,60
S_W=62; S_R=63; S_J=64; S_EP=65; S_TAG=66; S_CNT=67; S_FAST=68; S_DRY=69
DPP="row_mask:0xf bank_mask:0xf"
WMB=576*3456*2

def prologue(g):
    e=g.e
    e("s_cmp_ge_u32 s2, 256"); e("s_cbranch_scc1 L_end")
    e("s_load_dwordx16 s[32:47], s[0:1], 0")
    e("s_load_dwordx8 s[48:55], s[0:1], 64")
    e("s_load_dwordx4 s[56:59], s[0:1], 96")
    e("s_load_dwordx2 s[60:61], s[0:1], 112")
    e("v_and_b32 v1, 63, v0")
    e("v_lshrrev_b32 v2, 6, v0")
    e(f"s_lshr_b32 s{S_R}, s2, 3"); e(f"s_and_b32 s{S_J}, s2, 7")
    e(f"v_readfirstlane_b32 s{S_W}, v2")
    if g.cfg.get('codepf',1):
        e(f"s_cmp_lg_u32 s{S_W}, 7"); e("s_cbranch_scc1 L_nopf")
        e("s_getpc_b64 s[4:5]"); e("L_pc:")
        e(f"s_sub_u32 s4, s4, L_pc-{KN}_kernel"); e("s_subb_u32 s5, s5, 0")
        e(f"s_mov_b32 s6, L_code_end-{KN}_kernel"); e("s_mov_b32 s7, 0x20000")
        e(f"s_lshl_b32 s3, s{S_R}, 10"); e("v_lshlrev_b32 v2, 4, v1")
        e("buffer_load_dwordx4 v[60:63], v2, s[4:7], s3 offen")
        e("L_nopf:")
    e(f"s_cmp_eq_u32 s{S_J}, 0"); e("s_cbranch_scc1 L_tail")

def ws_setup(g):
    e=g.e
    e(f"s_load_dword s{S_EP}, s[{S_WS}:{S_WS+1}], {WS_EPOCH}")
    g.srd(4, S_WS, WS_SIZE)

def stamp_setup(g, v):
    g.stv=v
    if not g.cfg.get('stamp'): return
    e=g.e
    e("s_lshl_b32 s70, s2, 3"); e(f"s_add_u32 s70, s70, s{S_W}"); e("s_lshl_b32 s70, s70, 6"); e(f"s_add_u32 s70, s70, {WS_STAMP}")
    e(f"v_mov_b32 v{v+1}, s70"); e(f"v_mov_b32 v{v}, {OOB}")
    e("v_cmp_eq_u32 vcc, 0, v1"); e(f"v_cndmask_b32 v{v+1}, v{v}, v{v+1}, vcc")

def dma_inline(g, d, t0, t1):
    e=g.e
    e(f"v_lshrrev_b32 v{t0}, 3, v1"); e(f"v_bfe_u32 v{d}, v1, 1, 2"); e(f"v_lshrrev_b32 v{t1}, 4, v1")
    e(f"v_sub_u32 v{d}, v{d}, v{t1}"); e(f"v_and_b32 v{d}, 3, v{d}"); e(f"v_lshlrev_b32 v{d}, 5, v{d}")
    e(f"v_and_b32 v{t1}, 1, v1"); e(f"v_lshl_add_u32 v{d}, v{t1}, 4, v{d}")
def vtr_addr(g, d, t0, t1):
    e=g.e
    e(f"v_bfe_u32 v{t0}, v1, 2, 3"); e(f"v_lshrrev_b32 v{t1}, 1, v{t0}"); e(f"v_add_u32 v{t1}, s{S_W}, v{t1}"); e(f"v_and_b32 v{t1}, 3, v{t1}")
    e(f"v_lshlrev_b32 v{d}, 7, v{t0}"); e(f"v_lshl_add_u32 v{d}, v{t1}, 5, v{d}"); e(f"v_and_b32 v{t1}, 3, v1"); e(f"v_lshl_add_u32 v{d}, v{t1}, 3, v{d}")
    e(f"v_lshrrev_b32 v{t0}, 5, v1"); e(f"v_lshl_add_u32 v{d}, v{t0}, 10, v{d}")
def pair_addr(g, d, t, base):
    e=g.e
    e(f"v_lshrrev_b32 v{t}, 4, v0"); e(f"v_lshlrev_b32 v{d}, 6, v{t}")
    e(f"v_bfe_u32 v{t}, v0, 1, 2"); e(f"v_lshl_add_u32 v{d}, v{t}, 4, v{d}")
    e(f"v_bfe_u32 v{t}, v0, 3, 1"); e(f"v_lshl_add_u32 v{d}, v{t}, 3, v{d}")
    e(f"v_and_b32 v{t}, 1, v0"); e(f"v_lshl_add_u32 v{d}, v{t}, 2, v{d}"); e(f"v_add_u32 v{d}, {base}, v{d}")
def silu_pair(g, src, t, slog2e):
    e=g.e
    e(f"v_lshlrev_b32 v{t}, 16, v{src}"); e(f"v_and_b32 v{t+1}, 0xffff0000, v{src}")
    for r in (t,t+1):
        e(f"v_mul_f32 v{r+2}, {slog2e}, v{r}"); e(f"v_exp_f32 v{r+2}, -v{r+2}"); e(f"v_add_f32 v{r+2}, 1.0, v{r+2}")
        e(f"v_rcp_f32 v{r+2}, v{r+2}"); e(f"v_mul_f32 v{r}, v{r}, v{r+2}")
    e(f"v_cvt_pk_bf16_f32 v{src}, v{t}, v{t+1}")
def tr(g, dst, base, off):
    if off<65536: g.e(f"ds_read_b64_tr_b16 v[{dst}:{dst+1}], v{base} offset:{off}")
    else: g.e(f"ds_read_b64_tr_b16 v[{dst}:{dst+1}], v{base+1} offset:{off-65536}")
def mod_group_mfma(g, trb, af, aoff, BR, AR, nring, acc):
    e=g.e; lag=nring-1 if nring<=3 else 3
    def mm(k): e(f"v_mfma_f32_16x16x32_bf16 v[{acc}:{acc+3}], v[{AR+4*(k%nring)}:{AR+4*(k%nring)+3}], v[{BR+4*(k%nring)}:{BR+4*(k%nring)+3}], {'0' if k==0 else f'v[{acc}:{acc+3}]'}")
    for kb in range(18):
        bs=BR+4*(kb%nring); as_=AR+4*(kb%nring)
        tr(g,bs,trb,kb*4096); tr(g,bs+2,trb,kb*4096+2048)
        e(f"ds_read_b128 v[{as_}:{as_+3}], v{af} offset:{aoff+kb*64}")
        if kb>=lag: e(f"s_waitcnt lgkmcnt({3*lag})"); mm(kb-lag)
    for k in range(18-lag,18): e(f"s_waitcnt lgkmcnt({3*(17-k)})"); mm(k)

def stream(g):
    e=g.e; cfg=g.cfg
    KF=cfg.get('kvflags','nt'); VF=cfg.get('vflags',KF); D=cfg.get('depth',6); DV=cfg.get('depthv',17); WF=cfg.get('wflags','nt')
    NG=38; NE=15 if cfg.get('stamp') else 16; NMIN=33
    KR=16; VE=168; QF=232; DS=236; ACC=252
    QB=0; MAXB=512; LB=576; RED=1024; SCBS=12288; GST=16384
    P=cfg.get('il',0)
    def kreg(i): return KR+4*i
    def vreg(i): return VE+4*i if i<NE else kreg(i-NE+10)
    def preg(i): return KR+i
    e("v_lshrrev_b32 v6, 4, v1"); e("v_bfe_u32 v7, v1, 2, 2"); e("v_and_b32 v8, 3, v1")
    e("v_lshlrev_b32 v6, 6, v6"); e("v_lshlrev_b32 v7, 8, v7"); e("v_lshlrev_b32 v8, 4, v8")
    e("v_add3_u32 v2, v6, v7, v8")
    e("v_lshlrev_b32 v3, 4, v1")
    e(f"s_sub_u32 s{S_J}, s{S_J}, 1")
    e(f"s_mul_i32 s16, s{S_R}, 37"); e("s_lshr_b32 s16, s16, 8"); e("s_mul_i32 s16, s16, 7"); e(f"s_sub_u32 s16, s{S_R}, s16")
    if cfg.get('rot',1):
        e(f"s_add_u32 s{S_J}, s{S_J}, s16"); e(f"s_cmp_gt_u32 s{S_J}, 6"); e("s_cselect_b32 s18, 7, 0"); e(f"s_sub_u32 s{S_J}, s{S_J}, s18")
        e("s_lshl_b32 s16, s16, 1"); e("s_cmp_gt_u32 s16, 6"); e("s_cselect_b32 s18, 7, 0"); e("s_sub_u32 s16, s16, s18")
    e("s_add_u32 s17, s16, 3"); e("s_cmp_gt_u32 s17, 6"); e("s_cselect_b32 s18, 7, 0"); e("s_sub_u32 s17, s17, s18")
    e(f"s_cmp_lt_u32 s{S_R}, {NG1}"); e("s_cselect_b32 s17, s17, 15"); e("s_cselect_b32 s27, 38, 37"); e("s_cselect_b32 s19, 5, 3")
    e(f"s_mul_i32 s20, s{S_J}, s27")
    e(f"s_cmp_gt_u32 s{S_J}, s16"); e("s_cselect_b32 s18, s19, 0"); e("s_sub_u32 s20, s20, s18")
    e(f"s_cmp_gt_u32 s{S_J}, s17"); e("s_cselect_b32 s18, s19, 0"); e("s_sub_u32 s20, s20, s18")
    e(f"s_add_u32 s75, s{S_R}, {NG1}"); e("s_mov_b32 s72, 0")
    e(f"s_cmp_eq_u32 s{S_J}, s16"); e(f"s_cselect_b32 s72, {WMB}, 0")
    e(f"s_cmp_eq_u32 s{S_J}, s17"); e(f"s_cselect_b32 s72, {WMB}, s72"); e(f"s_cselect_b32 s75, s{S_R}, s75")
    e("s_cmp_lg_u32 s72, 0"); e("s_cselect_b32 s18, s19, 0"); e("s_sub_u32 s27, s27, s18")
    e("s_lshl_b32 s17, s20, 3")
    if P:
        e(f"s_add_u32 s26, s17, s{S_W}"); e(f"s_mul_i32 s16, s{S_W}, {P}"); e("s_add_u32 s17, s17, s16")
    else:
        e(f"s_mul_i32 s16, s{S_W}, s27"); e("s_add_u32 s17, s17, s16")
    e(f"s_lshl_b32 s18, s{S_R}, 21")
    e("s_lshl_b32 s16, s17, 10"); e("s_add_u32 s16, s16, s18")
    if P: e("s_lshl_b32 s26, s26, 10"); e("s_add_u32 s26, s26, s18")
    def soff(i):
        if not P: return f"s16, {i*1024}"
        if i<32: return f"s16, {((i//P)*P*8+i%P)*1024}"
        return f"s26, {(256+(i-32)*8)*1024}"
    for i in range(NMIN,NG):
        e(f"s_cmp_gt_u32 s27, {i}"); e(f"s_cselect_b32 s{78+i-NMIN}, 0, {OOB}"); e(f"s_or_b32 s{83+i-NMIN}, s{78+i-NMIN}, 0x7f800000")
    dma_inline(g,240,6,7); e("v_mul_u32_u24 v6, 6912, v6"); e("v_add_u32 v240, v240, v6")
    e("v_lshlrev_b32 v241, 2, v0")
    e("s_lshl_b32 s73, s75, 7"); e(f"s_mul_i32 s74, s{S_W}, {8*6912}"); e("s_add_u32 s73, s73, s74")
    e(f"s_lshl_b32 s74, s{S_W}, 10")
    e("s_waitcnt lgkmcnt(0)")
    g.srd(8,S_K,cfg.get('kvsize',0x4000000)); g.srd(12,S_V,cfg.get('kvsize',0x4000000))
    ktok=[]; vtok=[None]*NG
    def kload(i):
        e(f"s_add_u32 s17, {soff(i)}")
        off = 2
        if i>=NMIN: e(f"v_or_b32 v4, s{78+i-NMIN}, v2"); off=4
        ktok.append(g.vissue(f"buffer_load_dwordx4 v[{kreg(i)}:{kreg(i)+3}], v{off}, s[8:11], s17 offen {KF}"))
    def vload(i):
        e(f"s_add_u32 s17, {soff(i)}")
        off = 3
        if i>=NMIN: e(f"v_or_b32 v5, s{78+i-NMIN}, v3"); off=5
        vtok[i]=g.vissue(f"buffer_load_dwordx4 v[{vreg(i)}:{vreg(i)+3}], v{off}, s[12:15], s17 offen {VF}")
        if i>=NE and cfg.get('depthq'): e(f"s_waitcnt vmcnt({cfg['depthq']-1})")
    g.srd(28,S_C,0); e("s_min_u32 s30, s72, 2304")
    e("v_cmp_gt_u32 vcc, 288, v0"); e(f"v_mov_b32 v6, {OOB}"); e("v_cndmask_b32 v241, v6, v241, vcc"); e("s_mov_b64 s[76:77], vcc")
    e("s_cmp_eq_u32 s72, 0"); e("s_cbranch_scc1 L_s_noGd")
    g.vissue("buffer_load_dword v244, v241, s[28:31], 0 offen", False); g.vissue("buffer_load_dword v245, v241, s[28:31], 0 offen offset:1152", False)
    e(f"s_mov_b32 s28, s{S_WM}"); e(f"s_mov_b32 s29, s{S_WM+1}"); e("s_mov_b32 s30, s72")
    for nd in range(9):
        e(f"s_add_u32 m0, s74, {GST+nd*8192}"); e(f"s_add_u32 s17, s73, {nd*64*6912}")
        g.vissue(f"buffer_load_dwordx4 v240, s[28:31], s17 offen {WF} lds", False)
    e("L_s_noGd:")
    IG=D+cfg.get('gdelay',1)
    for i in range(NG):
        kload(i)
        if i==1: ws_setup(g)
        if i==D-1:
            stamp_setup(g, 228)
            e("s_waitcnt lgkmcnt(0)")
            g.stamp(0)
            e(f"s_add_u32 s{S_TAG}, s{S_EP}, 1")
            e("v_and_b32 v6, 1, v1"); e("v_mov_b32 v7, 0xffff"); e("v_lshlrev_b32 v6, 4, v6"); e("v_lshlrev_b32 v7, v6, v7")
            e("v_bfe_u32 v6, v1, 1, 2")
            for k in range(4):
                e(f"v_cmp_eq_u32 vcc, {k}, v6"); e(f"v_cndmask_b32 v{10+k}, 0, v7, vcc")
            e("s_mov_b32 s19, 0x3db504f3"); e("s_mov_b32 s20, 0x3fb8aa3b")
            e(f"s_and_b32 s21, s{S_R}, 15"); e("s_lshl_b32 s21, s21, 11"); e(f"s_add_u32 s21, s21, {WS_Q}")
            e(f"s_cmp_lt_u32 s{S_R}, 16"); e("s_cselect_b32 s24, 0, 0x02020202"); e("s_add_u32 s24, s24, 0x05040100")
            e("v_mov_b32 v8, 0xff800000"); e("v_mov_b32 v9, 0")
            for k in range(4): e(f"v_mov_b32 v{ACC+k}, 0")
        if g.vm>=D: e(f"s_waitcnt vmcnt({D-1})")
        if i==D-1:
            e("s_cmp_eq_u32 s72, 0"); e("s_cbranch_scc1 L_s_noG")
            silu_pair(g,244,236,"s20"); silu_pair(g,245,236,"s20")
            pair_addr(g,246,247,SCBS)
            e("s_mov_b64 exec, s[76:77]"); e("s_cbranch_execz L_s_nosilu2")
            e("ds_write_b32 v246, v244"); e("ds_write_b32 v246, v245 offset:1152")
            e("L_s_nosilu2:"); e("s_mov_b64 exec, -1")
            e("s_waitcnt lgkmcnt(0)"); e("s_barrier")
            e(f"s_cmp_gt_u32 s{S_W}, 3"); e("s_cbranch_scc1 L_s_noG")
            vtr_addr(g,14,6,7); e(f"v_add_u32 v14, {GST}, v14"); e("v_add_u32 v15, 0x10000, v14")
            e("v_bfe_u32 v6, v1, 1, 1"); e("v_mul_u32_u24 v6, 1152, v6"); e("v_lshrrev_b32 v7, 4, v1"); e("v_lshl_add_u32 v6, v7, 4, v6")
            mod_group_mfma(g,14,6,SCBS,VE,VE+24,6,QF)
            e("s_lshl_b32 s22, s75, 9"); e(f"s_lshl_b32 s23, s{S_W}, 7"); e("s_add_u32 s22, s22, s23"); e(f"s_add_u32 s22, s22, {WS_MOD}")
            e("v_cmp_gt_u32 vcc, 16, v1"); e("v_lshlrev_b32 v6, 3, v1"); e(f"v_mov_b32 v7, {OOB}"); e("v_cndmask_b32 v6, v7, v6, vcc")
            e(f"v_cvt_pk_bf16_f32 v{QF}, v{QF}, v{QF+2}"); e(f"v_mov_b32 v{QF+1}, s{S_TAG}")
            g.vissue(f"buffer_store_dwordx2 v[{QF}:{QF+1}], v6, s[4:7], s22 offen sc1", False)
            g.stamp(6)
            e("L_s_noG:")
    e(f"s_cmp_lg_u32 s{S_W}, 0"); e("s_cbranch_scc1 L_s_nopoll")
    g.vissue(f"buffer_load_dwordx4 v[{DS}:{DS+3}], v3, s[4:7], s21 offen sc1", False)
    g.vissue(f"buffer_load_dwordx4 v[{DS+4}:{DS+7}], v3, s[4:7], s21 offen offset:1024 sc1", False)
    e("L_s_nopoll:")
    ptok=g.vm
    for i in range(NE):
        vload(i)
        if DV<NE and i<NE-1: e(f"s_waitcnt vmcnt({DV-1})")
    g.vwait(ptok)
    g.stamp(1)
    e(f"s_cmp_lg_u32 s{S_W}, 0"); e("s_cbranch_scc1 L_s_qdone")
    e(f"s_mov_b32 s{S_CNT}, 0")
    e("L_s_qchk:")
    e(f"v_cmp_ne_u32 vcc, s{S_TAG}, v{DS+1}"); e(f"v_cmp_ne_u32 s[22:23], s{S_TAG}, v{DS+3}"); e("s_or_b64 vcc, vcc, s[22:23]")
    e(f"v_cmp_ne_u32 s[22:23], s{S_TAG}, v{DS+5}"); e("s_or_b64 vcc, vcc, s[22:23]")
    e(f"v_cmp_ne_u32 s[22:23], s{S_TAG}, v{DS+7}"); e("s_or_b64 vcc, vcc, s[22:23]")
    e("s_cbranch_vccz L_s_qok")
    e(f"s_add_u32 s{S_CNT}, s{S_CNT}, 1"); e(f"s_cmp_gt_u32 s{S_CNT}, {POLL_MAX}"); e("s_cbranch_scc1 L_s_qok")
    e("s_sleep 2")
    g.vissue(f"buffer_load_dwordx4 v[{DS}:{DS+3}], v3, s[4:7], s21 offen sc1", False)
    g.vissue(f"buffer_load_dwordx4 v[{DS+4}:{DS+7}], v3, s[4:7], s21 offen offset:1024 sc1", False)
    e("s_waitcnt vmcnt(0)"); e("s_branch L_s_qchk")
    e("L_s_qok:")
    e(f"v_perm_b32 v6, v{DS+2}, v{DS}, s24"); e(f"v_perm_b32 v7, v{DS+6}, v{DS+4}, s24")
    e("v_lshlrev_b32 v14, 2, v1")
    e(f"ds_write_b32 v14, v6 offset:{QB}"); e(f"ds_write_b32 v14, v7 offset:{QB+256}")
    e("L_s_qdone:")
    e("v_bfe_u32 v6, v1, 3, 1"); e("v_lshlrev_b32 v6, 8, v6"); e("v_lshrrev_b32 v7, 4, v1"); e("v_lshl_add_u32 v6, v7, 6, v6")
    e("v_and_b32 v7, 3, v1"); e("v_lshl_add_u32 v6, v7, 4, v6")
    e("s_waitcnt lgkmcnt(0)")
    e("s_barrier")
    e(f"ds_read_b128 v[{QF}:{QF+3}], v6 offset:{QB}")
    e("s_waitcnt lgkmcnt(0)")
    g.stamp(2)
    vn=[NE]
    def vnext():
        if vn[0]<NG: vload(vn[0]); vn[0]+=1
    def mf(i):
        d=DS+4*(i%4)
        e(f"v_mfma_f32_16x16x32_bf16 v[{d}:{d+3}], v[{kreg(i)}:{kreg(i)+3}], v[{QF}:{QF+3}], 0")
        if cfg.get('vinqk',0) and 10<=i<10+NG-NE: vload(i-10+NE)
        if 10<=i<10+cfg.get('vqk_n',4)*3 and (i-10)%3==0: vnext()
    def rnd_ops(a,b,ta,tb):
        o=[]
        o.append(f"v_cvt_pk_bf16_f32 v2, v{ta}, v{tb}")
        o.append(f"v_lshlrev_b32 v{ta}, 16, v2")
        if b is not None: o.append(f"v_and_b32 v{tb}, 0xffff0000, v2")
        o.append(f"v_mul_f32 v{ta}, s19, v{ta}")
        if b is not None: o.append(f"v_mul_f32 v{tb}, s19, v{tb}")
        o.append(f"v_cvt_pk_bf16_f32 v2, v{ta}, v{tb}")
        o.append(f"v_lshlrev_b32 v{preg(a)}, 16, v2")
        if a>=NMIN: o.append(f"v_min_f32 v{preg(a)}, s{83+a-NMIN}, v{preg(a)}")
        if b is not None:
            o.append(f"v_and_b32 v{preg(b)}, 0xffff0000, v2")
            if b>=NMIN: o.append(f"v_min_f32 v{preg(b)}, s{83+b-NMIN}, v{preg(b)}")
            o.append(f"v_max3_f32 v8, v8, v{preg(a)}, v{preg(b)}")
        else:
            o.append(f"v_max_f32 v8, v8, v{preg(a)}")
        return o
    mf(0); mf(1)
    prev=[]
    for n in range((NG+1)//2):
        a=2*n; b=2*n+1 if 2*n+1<NG else None
        if a+2<NG: mf(a+2)
        if a+3<NG: mf(a+3)
        ta,tb=(6,7) if n%2==0 else (14,15)
        da=DS+4*(a%4); db=DS+4*((a+1)%4)
        dp=[]
        for u in range(4):
            qp=f"quad_perm:[{u},{u},{u},{u}] {DPP}"
            if u==0:
                dp.append(f"v_mov_b32_dpp v{ta}, v{da} {qp}")
                if b is not None: dp.append(f"v_mov_b32_dpp v{tb}, v{db} {qp}")
            else:
                dp.append(f"v_add_f32_dpp v{ta}, v{da+u}, v{ta} {qp}")
                if b is not None: dp.append(f"v_add_f32_dpp v{tb}, v{db+u}, v{tb} {qp}")
        pi=0
        step=2 if b is not None else 1
        for k in range(0,len(dp),step):
            for x in dp[k:k+step]: e(x)
            for x in prev[pi:pi+2]: e(x)
            pi+=2
        for x in prev[pi:]: e(x)
        prev=rnd_ops(a,b,ta,tb if b is not None else ta)
    for x in prev: e(x)
    e("v_mov_b32 v6, v8"); e("v_permlane16_swap_b32 v8, v6"); e("v_max_f32 v8, v8, v6")
    e("v_mov_b32 v6, v8"); e("v_permlane32_swap_b32 v8, v6"); e("v_max_f32 v8, v8, v6")
    e("v_bfe_u32 v6, v1, 3, 1"); e("v_lshlrev_b32 v6, 5, v6")
    e(f"s_lshl_b32 s22, s{S_W}, 2"); e("v_add_u32 v7, s22, v6")
    e(f"ds_write_b32 v7, v8 offset:{MAXB}")
    e("s_waitcnt lgkmcnt(0)"); e("s_barrier")
    e(f"ds_read_b128 v[{DS}:{DS+3}], v6 offset:{MAXB}"); e(f"ds_read_b128 v[{DS+4}:{DS+7}], v6 offset:{MAXB+16}")
    e("s_waitcnt lgkmcnt(0)")
    e(f"v_max3_f32 v8, v{DS}, v{DS+1}, v{DS+2}"); e(f"v_max3_f32 v14, v{DS+3}, v{DS+4}, v{DS+5}")
    e(f"v_max3_f32 v8, v8, v{DS+6}, v{DS+7}"); e("v_max_f32 v8, v8, v14")
    e("v_mul_f32 v14, s20, v8")
    for i in range(NG):
        e(f"v_fma_f32 v{preg(i)}, v{preg(i)}, s20, -v14")
    for i in range(NG):
        e(f"v_exp_f32 v{preg(i)}, v{preg(i)}")
        if i>=1:
            e(f"v_add_f32 v9, v9, v{preg(i-1)}"); e(f"v_cvt_pk_bf16_f32 v{preg(i-1)}, v{preg(i-1)}, v{preg(i-1)}")
    e(f"v_add_f32 v9, v9, v{preg(NG-1)}"); e(f"v_cvt_pk_bf16_f32 v{preg(NG-1)}, v{preg(NG-1)}, v{preg(NG-1)}")
    e("v_mov_b32 v15, v9"); e("v_permlane16_swap_b32 v9, v15"); e("v_add_f32 v9, v9, v15")
    e("v_mov_b32 v15, v9"); e("v_permlane32_swap_b32 v9, v15"); e("v_add_f32 v9, v9, v15")
    e(f"ds_write_b32 v7, v9 offset:{LB}")
    e("v_lshrrev_b32 v2, 5, v1"); e("v_lshlrev_b32 v2, 9, v2"); e("v_and_b32 v4, 15, v1"); e("v_lshl_add_u32 v2, v4, 5, v2")
    e("v_bfe_u32 v4, v1, 4, 1"); e("v_lshl_add_u32 v2, v4, 4, v2"); e(f"s_lshl_b32 s22, s{S_W}, 10"); e("v_add_u32 v2, s22, v2")
    e(f"s_lshl_b32 s22, s{S_W}, 9"); e("v_lshlrev_b32 v4, 3, v1"); e("v_add_u32 v4, s22, v4")
    e(f"s_lshl_b32 s25, s{S_R}, 1"); e(f"s_add_u32 s25, s25, s{S_W}"); e("s_lshl_b32 s25, s25, 3"); e(f"s_add_u32 s25, s25, s{S_J}")
    e("s_lshl_b32 s25, s25, 10"); e(f"s_add_u32 s25, s25, {WS_E1}")
    def abuild(i):
        a=DS+4*(i%2)
        for k in range(4): e(f"v_and_b32 v{a+k}, v{preg(i)}, v{10+k}")
    g.stamp(3)
    abuild(0)
    for i in range(NG):
        if not cfg.get('vinqk',0):
            vnext()
            if i==0:
                for _ in range(cfg.get('vburst',0)): vnext()
        if i+1<NG: abuild(i+1)
        g.vwait(vtok[i])
        a=DS+4*(i%2)
        e(f"v_mfma_f32_16x16x32_bf16 v[{ACC}:{ACC+3}], v[{a}:{a+3}], v[{vreg(i)}:{vreg(i)+3}], v[{ACC}:{ACC+3}]")
        if i==4:
            e("s_waitcnt lgkmcnt(0)"); e("s_barrier")
            e(f"s_cmp_lg_u32 s{S_W}, 0"); e("s_cbranch_scc1 L_s_noml")
            t=DS+8
            e(f"ds_read_b128 v[{t}:{t+3}], v6 offset:{LB}"); e(f"ds_read_b128 v[{t+4}:{t+7}], v6 offset:{LB+16}")
            e(f"s_lshl_b32 s22, s{S_R}, 8"); e(f"s_lshl_b32 s23, s{S_J}, 4"); e("s_add_u32 s22, s22, s23"); e(f"s_add_u32 s22, s22, {WS_ML}")
            e("v_lshlrev_b32 v14, 2, v6")
            e("v_and_b32 v15, 0x37, v1"); e("v_cmp_eq_u32 vcc, 0, v15"); e(f"v_mov_b32 v15, {OOB}"); e("v_cndmask_b32 v14, v15, v14, vcc")
            e("s_waitcnt lgkmcnt(0)")
            e(f"v_add_f32 v{t}, v{t}, v{t+1}"); e(f"v_add_f32 v{t+2}, v{t+2}, v{t+3}"); e(f"v_add_f32 v{t+4}, v{t+4}, v{t+5}"); e(f"v_add_f32 v{t+6}, v{t+6}, v{t+7}")
            e(f"v_add_f32 v{t}, v{t}, v{t+2}"); e(f"v_add_f32 v{t+4}, v{t+4}, v{t+6}"); e(f"v_add_f32 v{t+2}, v{t}, v{t+4}")
            e(f"v_mov_b32 v{t}, v8"); e(f"v_mov_b32 v{t+1}, s{S_TAG}"); e(f"v_mov_b32 v{t+3}, s{S_TAG}")
            g.vissue(f"buffer_store_dwordx4 v[{t}:{t+3}], v14, s[4:7], s22 offen sc1", False)
            e("L_s_noml:")
        if i==NG-2:
            e(f"v_mov_b32 v{DS+9}, s{S_TAG}"); e(f"v_mov_b32 v{DS+11}, s{S_TAG}")
    e(f"ds_write_b128 v2, v[{ACC}:{ACC+3}] offset:{RED}")
    g.stamp(4)
    e("s_waitcnt lgkmcnt(0)"); e("s_barrier")
    e(f"s_cmp_gt_u32 s{S_W}, 1"); e("s_cbranch_scc1 L_end")
    t=KR
    for w in range(8): e(f"ds_read_b64 v[{t+2*w}:{t+2*w+1}], v4 offset:{RED+w*1024}")
    for w in range(0,16,4):
        e(f"s_waitcnt lgkmcnt({6-w//2})")
        e(f"v_add_f32 v{t+w}, v{t+w}, v{t+w+2}"); e(f"v_add_f32 v{t+w+1}, v{t+w+1}, v{t+w+3}")
    for w in (0,8):
        e(f"v_add_f32 v{t+w}, v{t+w}, v{t+w+4}"); e(f"v_add_f32 v{t+w+1}, v{t+w+1}, v{t+w+5}")
    e(f"v_add_f32 v{DS+8}, v{t}, v{t+8}"); e(f"v_add_f32 v{DS+10}, v{t+1}, v{t+9}")
    e(f"buffer_store_dwordx4 v[{DS+8}:{DS+11}], v3, s[4:7], s25 offen sc1")
    g.stamp(5)
    e("s_endpgm")

HA=0; HB=73728; MISC=147456
SCB=0; HBUF=2304; OB=4608; HIDB=5376; W1XP=6144; TRED=6656; STAT=8704
LDS_BYTES=MISC+8832
WO=64; W1=144; W2H=220
X1R=12
def w1x(i): return 128+4*i if i<4 else 216

def tail(g):
    e=g.e; cfg=g.cfg
    WF=cfg.get('wflags','nt'); W1F=cfg.get('w1flags','')
    g.vm=0; g.intail=True
    e("L_tail:")
    if cfg.get('dbgtime'): e("s_memrealtime s[86:87]")
    dma_inline(g,17,16,18)
    e("v_mul_u32_u24 v2, 6912, v16"); e("v_add_u32 v2, v2, v17")
    e("v_lshl_add_u32 v3, v16, 13, v17")
    e("v_mul_u32_u24 v4, 1152, v16"); e("v_add_u32 v4, v4, v17")
    e("s_waitcnt lgkmcnt(0)")
    if cfg.get('dbgtime'): e("s_mov_b32 s99, s86")
    def dma(voff, gconst, lconst, flags, counted=True):
        e(f"s_add_u32 m0, s19, {lconst}")
        e(f"s_add_u32 s17, s18, {gconst}")
        return g.vissue(f"buffer_load_dwordx4 v{voff}, s[8:11], s17 offen {flags} lds", counted)
    def chunk_G(half):
        g.srd(8,S_WM,WMB)
        e(f"s_cmp_lt_u32 s{S_R}, {NG1}"); e(f"s_cselect_b32 s10, {WMB}, 0")
        e(f"s_lshl_b32 s18, s{S_R}, 7")
        e(f"s_mul_i32 s17, s{S_W}, {8*6912}"); e("s_add_u32 s18, s18, s17")
        e(f"s_lshl_b32 s19, s{S_W}, 10")
        for i in range(9): t=dma(2, i*64*6912, half+i*8192, WF)
        return t
    def chunk_wq(half, hf, counted=True):
        g.srd(8,S_WQ,cfg.get('wqsize',576*4096*2))
        e(f"s_and_b32 s17, s{S_W}, 1"); e(f"s_lshr_b32 s19, s{S_W}, 1")
        e(f"s_lshl_b32 s18, s{S_R}, 8"); e("s_lshl_b32 s20, s17, 7"); e("s_add_u32 s18, s18, s20")
        e("s_lshl_b32 s20, s19, 16"); e("s_add_u32 s18, s18, s20")
        e("s_mul_i32 s17, s17, 36"); e("s_add_u32 s19, s19, s17"); e("s_lshl_b32 s19, s19, 10")
        for i in range(9): t=dma(3, hf*288*8192+i*32*8192, half+i*4096, WF, counted)
        return t
    def chunk_1152(half, ptr, nbytes, rows_per_wg, row0):
        g.srd(8,ptr,nbytes)
        e(f"s_mul_i32 s18, s{S_R}, {rows_per_wg*1152}"); e(f"s_mul_i32 s17, s{S_W}, {8*1152}"); e("s_add_u32 s18, s18, s17")
        e(f"s_lshl_b32 s19, s{S_W}, 10")
        for i in range(9): t=dma(4, row0*1152+i*128, half+i*8192, WF)
        return t
    def chunk_w2h(half):
        g.srd(8,S_W2,4608*1152)
        e(f"s_and_b32 s17, s{S_W}, 1"); e(f"s_mul_i32 s17, s17, {8*1152}")
        e(f"s_mul_i32 s18, s{S_R}, {144*1152}"); e("s_add_u32 s18, s18, s17")
        e(f"s_lshr_b32 s17, s{S_W}, 1"); e("s_lshl_b32 s17, s17, 7"); e("s_add_u32 s18, s18, s17")
        e(f"s_lshl_b32 s19, s{S_W}, 10")
        l=g.label()
        e(f"s_cmp_gt_u32 s{S_W}, 1"); e(f"s_cbranch_scc1 {l}")
        dma(4, 128*1152+1024, half+16384, WF, False)
        e(f"{l}:")
        for i in range(2): t=dma(4, 128*1152+i*512, half+i*8192, WF)
        return t
    def chunk_w1(half, cc):
        g.srd(8,S_W1,576*9216)
        e(f"s_mul_i32 s18, s{S_R}, 288"); e(f"s_mul_i32 s17, s{S_W}, {3*9216}"); e("s_add_u32 s18, s18, s17")
        e(f"s_mul_i32 s19, s{S_W}, 864")
        e("s_mov_b64 exec, s[26:27]")
        for i in range(8): t=dma(5, (192*cc+24*i)*9216, half+i*8*864, W1F)
        e("s_mov_b64 exec, -1")
        return t
    def trbase(src, half, sextra=None):
        if sextra: e(f"v_add_u32 v14, {sextra}, v{src}");
        else: e(f"v_mov_b32 v14, v{src}")
        if half: e(f"v_add_u32 v14, {half}, v14")
        e("v_add_u32 v15, 0x10000, v14")
    bar=lambda: e("s_barrier")

    ws_setup(g)
    stamp_setup(g, 254); g.stamp(0)
    e("v_lshlrev_b32 v16, 2, v0")
    e("v_cmp_gt_u32 vcc, 288, v0"); e("s_mov_b64 s[28:29], vcc")
    e(f"v_mov_b32 v17, {OOB}"); e("v_cndmask_b32 v16, v17, v16, s[28:29]")
    g.srd(12,S_X,2304)
    g.vissue("buffer_load_dword v22, v16, s[12:15], 0 offen"); g.vissue("buffer_load_dword v23, v16, s[12:15], 0 offen offset:1152")
    e("v_lshrrev_b32 v18, 5, v1"); e("v_mul_u32_u24 v18, 1152, v18")
    g.vissue("buffer_load_ushort v24, v18, s[12:15], 0 offen")
    e("v_and_b32 v19, 3, v1"); e(f"s_lshl_b32 s16, s{S_R}, 5"); e(f"s_lshl_b32 s17, s{S_W}, 2"); e("s_add_u32 s16, s16, s17"); e("v_add_u32 v19, s16, v19")
    e("v_lshlrev_b32 v25, 1, v19"); e("v_add_u32 v13, v25, v18")
    g.vissue("buffer_load_ushort v230, v13, s[12:15], 0 offen")
    g.srd(12,S_B2,1152)
    g.vissue("buffer_load_ushort v231, v25, s[12:15], 0 offen")
    g.srd(12,S_B1,9216)
    e(f"s_mul_i32 s16, s{S_R}, 288"); e(f"s_lshl_b32 s17, s{S_W}, 5"); e("s_add_u32 s17, s17, s16")
    e("v_and_b32 v25, 15, v1"); e("v_lshlrev_b32 v25, 1, v25")
    g.vissue("buffer_load_ushort v232, v25, s[12:15], s17 offen")
    e("v_lshrrev_b32 v25, 4, v1"); e("v_lshlrev_b32 v25, 3, v25")
    tsm=g.vissue("buffer_load_dwordx2 v[234:235], v25, s[12:15], s16 offen offset:256")
    c1=chunk_wq(HA,0); c2=chunk_wq(HB,1)
    g.srd(12,S_OUT,2304); g.vissue("buffer_load_ushort v63, v13, s[12:15], 0 offen")
    e("v_mul_u32_u24 v25, 3641, v1"); e("v_lshrrev_b32 v25, 16, v25"); e("v_mul_u32_u24 v26, 18, v25"); e("v_sub_u32 v26, v1, v26")
    e("v_mul_u32_u24 v5, 9216, v25"); e("v_lshl_add_u32 v5, v26, 4, v5")
    e("v_cmp_gt_u32 s[26:27], 54, v1")
    vtr_addr(g,6,25,26)
    e("v_and_b32 v26, 3, v1"); e("v_lshrrev_b32 v25, 2, v1"); e("v_mul_u32_u24 v7, 288, v25"); e("v_lshl_add_u32 v7, v26, 3, v7")
    e("v_bfe_u32 v25, v1, 1, 1"); e("v_lshrrev_b32 v26, 4, v1"); e("v_lshlrev_b32 v26, 4, v26"); e(f"v_add_u32 v26, {MISC}, v26")
    e("v_mul_u32_u24 v8, 1152, v25"); e("v_add_u32 v8, v8, v26")
    e("v_mul_u32_u24 v9, 384, v25"); e("v_add_u32 v9, v9, v26")
    pair_addr(g,10,25,MISC)
    e("v_cmp_gt_u32 vcc, 16, v1"); e("v_lshrrev_b32 v25, 2, v1"); e("v_lshlrev_b32 v25, 11, v25"); e("v_and_b32 v26, 3, v1"); e("v_lshl_add_u32 v25, v26, 4, v25"); e("v_cndmask_b32 v11, v17, v25, vcc")
    e("v_lshlrev_b32 v25, 3, v1"); e("v_cndmask_b32 v12, v17, v25, vcc")
    e("v_lshlrev_b32 v25, 4, v0"); e("v_cndmask_b32 v236, v17, v25, s[28:29]"); e("v_lshlrev_b32 v237, 4, v1")
    e("s_mov_b32 s30, 0x3fb8aa3b")
    e("v_lshrrev_b32 v25, 4, v1"); e("v_lshlrev_b32 v25, 5, v25"); e(f"v_add_u32 v239, {MISC}, v25")
    e(f"s_lshl_b32 s16, s{S_W}, 2"); e("v_add_u32 v238, s16, v239")
    e(f"s_mov_b32 s84, {WS_X1}"); e(f"s_mov_b32 s85, {WS_X1+4608}")
    e("v_and_b32 v25, 15, v1"); e("v_cmp_gt_u32 vcc, 16, v1"); e("v_cndmask_b32 v26, 1, 0, vcc")
    e("v_lshl_add_u32 v27, v26, 4, v25"); e("v_lshlrev_b32 v27, 2, v27"); e(f"v_add_u32 v233, {MISC}, v27")
    e("v_mul_u32_u24 v27, 384, v26"); e("v_lshrrev_b32 v26, 2, v25"); e("v_lshl_add_u32 v27, v26, 4, v27")
    e("v_and_b32 v26, 3, v25"); e("v_lshl_add_u32 v27, v26, 1, v27")
    e(f"s_lshr_b32 s16, s{S_W}, 1"); e("s_lshl_b32 s16, s16, 6"); e(f"s_and_b32 s17, s{S_W}, 1"); e("s_lshl_b32 s17, s17, 3"); e("s_add_u32 s16, s16, s17")
    e(f"s_add_u32 s16, s16, {MISC}"); e("v_add_u32 v252, s16, v27")
    e("v_bfe_u32 v25, v1, 1, 1"); e("v_lshlrev_b32 v25, 6, v25"); e("v_lshrrev_b32 v26, 4, v1"); e("v_lshl_add_u32 v25, v26, 4, v25"); e(f"v_add_u32 v253, {MISC}, v25")
    e(f"s_lshr_b32 s16, s{S_W}, 1"); e("s_lshl_b32 s16, s16, 14"); e(f"s_and_b32 s17, s{S_W}, 1"); e("s_lshl_b32 s17, s17, 13"); e("s_add_u32 s16, s16, s17")
    e(f"s_lshl_b32 s17, s{S_R}, 6"); e("s_add_u32 s31, s16, s17")
    e("v_bfe_u32 v25, v1, 2, 3"); e("v_cmp_eq_u32 vcc, 0, v25"); e("v_lshlrev_b32 v25, 2, v13"); e("v_cndmask_b32 v250, v17, v25, vcc"); e("v_cndmask_b32 v251, v17, v13, vcc")
    e("v_cmp_gt_u32 s[86:87], 16, v1") if not cfg.get('dbgtime') else None
    e("s_waitcnt lgkmcnt(0)")
    if cfg.get('dbgtime'): e("v_cmp_gt_u32 s[86:87], 16, v1")
    e(f"s_add_u32 s{S_TAG}, s{S_EP}, 1")
    l=g.label()
    e(f"s_cmp_lg_u32 s{S_W}, 0"); e(f"s_cbranch_scc1 {l}")
    e("s_getreg_b32 s16, hwreg(HW_REG_XCC_ID, 0, 4)")
    e("v_mov_b32 v26, s16"); e(f"v_mov_b32 v27, s{S_TAG}"); e("v_cmp_eq_u32 vcc, 0, v1"); e("v_cndmask_b32 v25, v17, 0, vcc")
    e(f"s_lshl_b32 s16, s{S_R}, 3")
    g.vissue(f"buffer_store_dwordx2 v[26:27], v25, s[4:7], s16 offen offset:{WS_XCC} sc1", False)
    e(f"{l}:")
    g.vwait(tsm)
    e("v_lshlrev_b32 v230, 16, v230"); e("v_lshlrev_b32 v231, 16, v231"); e("v_lshlrev_b32 v232, 16, v232")
    def ln_part1():
        e("v_readlane_b32 s72, v44, 0"); e("v_readlane_b32 s73, v44, 32")
        e("v_subrev_f32 v46, s72, v40"); e("v_subrev_f32 v47, s72, v41"); e("v_subrev_f32 v48, s73, v42"); e("v_subrev_f32 v49, s73, v43")
        for r in range(46,50): e(f"v_cndmask_b32 v{r}, 0, v{r}, s[28:29]")
        e("v_add_f32 v50, v46, v47"); e("v_add_f32 v51, v48, v49")
        e("v_mul_f32 v52, v46, v46"); e("v_mul_f32 v53, v48, v48"); e("v_fmac_f32 v52, v47, v47"); e("v_fmac_f32 v53, v49, v49")
        e("v_permlane32_swap_b32 v50, v51"); e("v_permlane32_swap_b32 v52, v53")
        e("v_add_f32 v50, v50, v51"); e("v_add_f32 v52, v52, v53")
        e("v_permlane16_swap_b32 v50, v52"); e("v_add_f32 v50, v50, v52")
        for m in ("quad_perm:[1,0,3,2]","quad_perm:[2,3,0,1]","row_half_mirror","row_mirror"):
            e(f"v_add_f32_dpp v50, v50, v50 {m} {DPP}")
        e(f"ds_write_b32 v238, v50 offset:{STAT}")
    def ln_part2():
        e(f"ds_read_b128 v[52:55], v239 offset:{STAT}"); e(f"ds_read_b128 v[56:59], v239 offset:{STAT+16}")
        e("s_waitcnt lgkmcnt(0)")
        e("v_add_f32 v52, v52, v53"); e("v_add_f32 v54, v54, v55"); e("v_add_f32 v56, v56, v57"); e("v_add_f32 v58, v58, v59")
        e("v_add_f32 v52, v52, v54"); e("v_add_f32 v56, v56, v58"); e("v_add_f32 v52, v52, v56")
        e("v_mov_b32 v53, v52"); e("v_permlane16_swap_b32 v52, v53")
        e("v_mul_f32 v52, 0x3ae38e39, v52"); e("v_mul_f32 v53, 0x3ae38e39, v53")
        e("v_fma_f32 v53, -v52, v52, v53"); e("v_add_f32 v52, v44, v52")
        e("v_max_f32 v53, 0, v53")
        g.r2(52,53,54)
        e("v_readlane_b32 s72, v52, 0"); e("v_readlane_b32 s73, v52, 32")
        e("v_add_f32 v53, 0x3727c5ac, v53"); g.r1(53)
        e("v_sqrt_f32 v53, v53")
        e("v_subrev_f32 v40, s72, v40"); e("v_subrev_f32 v41, s72, v41")
        g.r1(53)
        e("v_rcp_f32 v53, v53")
        e("v_subrev_f32 v42, s73, v42"); e("v_subrev_f32 v43, s73, v43")
        e("v_readlane_b32 s74, v53, 0"); e("v_readlane_b32 s75, v53, 32")
        g.r2(40,41,46); g.r2(42,43,47)
        e("v_mul_f32 v40, s74, v40"); e("v_mul_f32 v41, s74, v41"); e("v_mul_f32 v42, s75, v42"); e("v_mul_f32 v43, s75, v43")
        g.r2(40,41,46); g.r2(42,43,47)
    def modulate(c1_, s_):
        for k in range(4): e(f"v_mul_f32 v{40+k}, v{40+k}, v{c1_+k}")
        g.r2(40,41,46); g.r2(42,43,47)
        for k in range(4): e(f"v_add_f32 v{40+k}, v{40+k}, v{s_+k}")
        e("v_cvt_pk_bf16_f32 v46, v40, v41"); e("v_cvt_pk_bf16_f32 v47, v42, v43")
        e("s_mov_b64 exec, s[28:29]")
        l=g.label(); e(f"s_cbranch_execz {l}")
        e(f"ds_write_b32 v10, v46 offset:{HBUF}"); e(f"ds_write_b32 v10, v47 offset:{HBUF+1152}")
        e(f"{l}:"); e("s_mov_b64 exec, -1")
    def unpack_cs(gs, gc, c1_, s_):
        e(f"v_lshlrev_b32 v{s_}, 16, v{gs}"); e(f"v_lshlrev_b32 v{s_+1}, 16, v{gs+2}")
        e(f"v_and_b32 v{s_+2}, 0xffff0000, v{gs}"); e(f"v_and_b32 v{s_+3}, 0xffff0000, v{gs+2}")
        e(f"v_lshlrev_b32 v{c1_}, 16, v{gc}"); e(f"v_lshlrev_b32 v{c1_+1}, 16, v{gc+2}")
        e(f"v_and_b32 v{c1_+2}, 0xffff0000, v{gc}"); e(f"v_and_b32 v{c1_+3}, 0xffff0000, v{gc+2}")
        for k in range(4): e(f"v_add_f32 v{c1_+k}, 1.0, v{c1_+k}")
        g.r2(c1_,c1_+1,gs); g.r2(c1_+2,c1_+3,gs)
    def poll(loads, tagregs, mask=None, sleep=None, name="P", extra_tag=None, dry=False):
        l=g.label(name); d=g.label(name+"d")
        if dry: e(f"s_cmp_lg_u32 s{S_DRY}, 0"); e(f"s_cbranch_scc1 {d}")
        e(f"s_mov_b32 s{S_CNT}, 0")
        e(f"{l}:")
        for x in loads: g.vissue(x, False)
        e("s_waitcnt vmcnt(0)")
        for i,r in enumerate(tagregs):
            if i==0: e(f"v_cmp_ne_u32 vcc, s{S_TAG}, v{r}")
            else: e(f"v_cmp_ne_u32 s[22:23], s{S_TAG}, v{r}"); e("s_or_b64 vcc, vcc, s[22:23]")
        if mask: e(f"s_and_b64 vcc, vcc, {mask}")
        if extra_tag: e(f"v_cmp_ne_u32 s[22:23], s{S_TAG}, v{extra_tag}"); e("s_or_b64 vcc, vcc, s[22:23]")
        e(f"s_cbranch_vccz {d}")
        if sleep: e(f"s_sleep {sleep}")
        e(f"s_add_u32 s{S_CNT}, s{S_CNT}, 1"); e(f"s_cmp_lt_u32 s{S_CNT}, {POLL_MAX}"); e(f"s_cbranch_scc1 {l}")
        e(f"{d}:")
    def pollg(loads, groups, name, first_done=False):
        l=g.label(name); d=g.label(name+"d"); c=g.label(name+"c")
        e(f"s_mov_b32 s{S_CNT}, 0")
        if first_done: e(f"s_branch {c}")
        e(f"{l}:")
        for x in loads: g.vissue(x, False)
        e("s_waitcnt vmcnt(0)")
        e(f"{c}:")
        e("s_mov_b64 s[90:91], 0")
        for tagregs,mask in groups:
            for i,r in enumerate(tagregs):
                if i==0: e(f"v_cmp_ne_u32 vcc, s{S_TAG}, v{r}")
                else: e(f"v_cmp_ne_u32 s[22:23], s{S_TAG}, v{r}"); e("s_or_b64 vcc, vcc, s[22:23]")
            e(f"s_and_b64 vcc, vcc, {mask}"); e("s_or_b64 s[90:91], s[90:91], vcc")
        e("s_cmp_eq_u64 s[90:91], 0"); e(f"s_cbranch_scc1 {d}")
        e("s_sleep 2")
        e(f"s_add_u32 s{S_CNT}, s{S_CNT}, 1"); e(f"s_cmp_lt_u32 s{S_CNT}, {POLL_MAX}"); e(f"s_cbranch_scc1 {l}")
        e(f"{d}:")
    e("v_lshlrev_b32 v40, 16, v22"); e("v_and_b32 v41, 0xffff0000, v22"); e("v_lshlrev_b32 v42, 16, v23"); e("v_and_b32 v43, 0xffff0000, v23")
    e("v_lshlrev_b32 v44, 16, v24")
    ln_part1()
    e("s_waitcnt lgkmcnt(0)"); bar()
    g.stamp(1)
    ln_part2()
    def consume_wq(half, hf):
        e(f"s_lshr_b32 s16, s{S_W}, 2"); e(f"s_mul_i32 s16, s16, {36*1024}")
        trbase(6, half, "s16")
        for kb in range(9):
            d=W1+4*(9*hf+kb); tr(g,d,14,kb*4096); tr(g,d+2,14,kb*4096+2048)
            if kb%4==3: e("s_waitcnt lgkmcnt(0)")
        e("s_waitcnt lgkmcnt(0)")
    g.vwait(c1); bar()
    consume_wq(HA,0); bar()
    e(f"s_mov_b32 s72, {WS_MOD}"); e(f"s_mov_b32 s73, {WS_MOD+576*8}")
    LD1=["buffer_load_dwordx4 v[16:19], v236, s[4:7], s72 offen sc1","buffer_load_dwordx4 v[20:23], v236, s[4:7], s73 offen sc1"]
    for x in LD1: t1=g.vissue(x)
    c3=chunk_1152(HA,S_WO,4096*1152,128,0)
    g.vissue("buffer_load_dwordx4 v[48:51], v236, s[4:7], s72 offen sc1"); t1b=g.vissue("buffer_load_dwordx4 v[52:55], v236, s[4:7], s73 offen sc1")
    g.vwait(t1); bar()
    consume_wq(HB,1)
    e(f"v_cmp_ne_u32 vcc, s{S_TAG}, v17")
    for r in (19,21,23): e(f"v_cmp_ne_u32 s[22:23], s{S_TAG}, v{r}"); e("s_or_b64 vcc, vcc, s[22:23]")
    e("s_and_b64 vcc, vcc, s[28:29]"); e("s_cbranch_vccz L_f1ok")
    g.vwait(t1b)
    for k in range(8): e(f"v_mov_b32 v{16+k}, v{48+k}")
    pollg(LD1, [([17,19,21,23],"s[28:29]")], "F1", first_done=True)
    e("L_f1ok:")
    g.stamp(2)
    unpack_cs(16,20,24,28)
    modulate(24,28)
    e("s_waitcnt lgkmcnt(0)"); bar()
    for kb in range(18):
        as_=16+4*(kb%6)
        e(f"ds_read_b128 v[{as_}:{as_+3}], v8 offset:{HBUF+kb*64}")
        if kb>=3:
            k=kb-3; e("s_waitcnt lgkmcnt(3)")
            e(f"v_mfma_f32_16x16x32_bf16 v[60:63], v[{16+4*(k%6)}:{19+4*(k%6)}], v[{W1+4*k}:{W1+4*k+3}], {'0' if k==0 else 'v[60:63]'}")
    for k in range(15,18):
        e(f"s_waitcnt lgkmcnt({17-k})")
        e(f"v_mfma_f32_16x16x32_bf16 v[60:63], v[{16+4*(k%6)}:{19+4*(k%6)}], v[{W1+4*k}:{W1+4*k+3}], v[60:63]")
    e(f"s_lshl_b32 s16, s{S_R}, 10"); e(f"s_lshl_b32 s17, s{S_W}, 7"); e("s_add_u32 s16, s16, s17"); e(f"s_add_u32 s16, s16, {WS_Q}")
    e("v_cvt_pk_bf16_f32 v60, v60, v62"); e(f"v_mov_b32 v61, s{S_TAG}")
    g.vissue("buffer_store_dwordx2 v[60:61], v12, s[4:7], s16 offen sc1", False)
    g.stamp(3)
    c4=chunk_1152(HB,S_WO,4096*1152,128,64)
    g.stamp(14)
    g.srd(12,S_W2,4608*1152)
    e("v_lshrrev_b32 v16, 4, v1"); e("v_mul_u32_u24 v16, 4608, v16"); e("v_and_b32 v17, 15, v1"); e("v_lshl_add_u32 v16, v17, 1, v16")
    e(f"s_mul_i32 s16, s{S_R}, {144*1152}"); e(f"s_lshl_b32 s17, s{S_W}, 5"); e("s_add_u32 s16, s16, s17"); e(f"s_add_u32 s16, s16, {128*1152}")
    e("s_add_u32 s17, s16, 2304")
    for i in (4,0,1,2,3):
        if i==4:
            l=g.label(); e(f"s_cmp_gt_u32 s{S_W}, 3"); e(f"s_cbranch_scc1 {l}")
        for j in range(4):
            g.vissue(f"buffer_load_ushort v{18+4*i+j}, v16, s[12:15], s{16+j//2} offen offset:{i*256+(j%2)*1152}", i<4)
        if i==4: e(f"{l}:")
    tw2=g.vm
    if cfg.get('dry',0):
        e(f"s_mov_b32 s{S_DRY}, 1"); e("s_mov_b32 s6, 0")
        e("s_branch L_chain")
        e("L_after_dry:")
        e(f"s_mov_b32 s6, {WS_SIZE}")
    e(f"s_mov_b32 s{S_DRY}, 0")
    def consume_1152(half, hf, dst):
        e(f"s_lshr_b32 s16, s{S_W}, 2"); e("s_lshl_b32 s16, s16, 13")
        trbase(6, half, "s16")
        for i in range(5):
            if i==4:
                l=g.label(); e(f"s_cmp_gt_u32 s{S_W}, 3"); e(f"s_cbranch_scc1 {l}")
            for kl in range(2):
                d=dst+16*i+4*(2*hf+kl)
                tr(g,d,14,i*16384+kl*4096); tr(g,d+2,14,i*16384+kl*4096+2048)
            if i%2==1: e("s_waitcnt lgkmcnt(4)")
        e(f"{l}:")
        e("s_waitcnt lgkmcnt(0)")
    g.vwait(t1b); bar(); consume_1152(HA,0,WO); bar()
    e("v_cmp_gt_u32 s[24:25], 32, v1"); e("v_lshlrev_b32 v52, 3, v1")
    e("v_and_b32 v53, 3, v1"); e("v_lshlrev_b32 v53, 3, v53"); e(f"s_lshl_b32 s16, s{S_R}, 8"); e(f"s_lshl_b32 s17, s{S_W}, 5"); e("s_add_u32 s16, s16, s17"); e("v_add_u32 v53, s16, v53")
    e(f"s_cmp_lt_u32 s{S_R}, 18"); e("s_cselect_b64 s[92:93], -1, 0")
    e(f"s_mov_b32 s72, {WS_MOD+2*576*8}"); e(f"s_mov_b32 s73, {WS_MOD+3*576*8}"); e(f"s_mov_b32 s74, {WS_MOD+4*576*8}"); e(f"s_mov_b32 s75, {WS_MOD+5*576*8}")
    LD2=["buffer_load_dwordx4 v[40:43], v236, s[4:7], s73 offen sc1",
           "buffer_load_dwordx4 v[44:47], v236, s[4:7], s74 offen sc1",
           f"buffer_load_dwordx2 v[54:55], v52, s[4:7], 0 offen offset:{WS_XCC} sc1",
           "buffer_load_dwordx2 v[48:49], v53, s[4:7], s72 offen sc1",
           "buffer_load_dwordx2 v[50:51], v53, s[4:7], s75 offen sc1"]
    GR2=[([41,43,45,47],"s[28:29]"),([55],"s[24:25]"),([49,51],"s[92:93]")]
    for x in LD2: t2=g.vissue(x)
    c5=chunk_w1(HA,0)
    g.vwait(c4)
    bar(); consume_1152(HB,1,WO); bar()
    c6=chunk_w1(HB,1)
    g.vwait(t2)
    for i in range(5):
        for h in range(2): e(f"v_lshl_or_b32 v{W2H+2*i+h}, v{18+4*i+2*h+1}, 16, v{18+4*i+2*h}")
    g.stamp(15)
    pollg(LD2, GR2, "G2", first_done=True)
    e("v_readfirstlane_b32 s16, v54"); e("v_cmp_ne_u32 vcc, s16, v54"); e("s_and_b64 vcc, vcc, s[24:25]")
    e("s_cmp_eq_u64 vcc, 0"); e(f"s_cselect_b32 s{S_FAST}, {0 if cfg.get('noFast') else 1}, 0")
    e("v_cmp_gt_u32 vcc, 32, v1")
    e("v_lshlrev_b32 v52, 16, v48"); e("v_and_b32 v53, 0xffff0000, v48"); e("v_cndmask_b32 v248, v53, v52, vcc")
    e("v_lshlrev_b32 v52, 16, v50"); e("v_and_b32 v53, 0xffff0000, v50"); e("v_cndmask_b32 v249, v53, v52, vcc")
    unpack_cs(40,44,240,244)
    def consume_w1(half, cc):
        e(f"s_lshl_b32 s16, s{S_W}, 5")
        trbase(7, half, "s16")
        for kl in range(6):
            d=W1+4*(6*cc+kl); tr(g,d,14,kl*9216); tr(g,d+2,14,kl*9216+4608)
        e("s_waitcnt lgkmcnt(0)")
        for w in range(4,8):
            its=[(i,(w-4)+4*i) for i in range(5) if 6*cc<=(w-4)+4*i<6*cc+6]
            l=g.label(); e(f"s_cmp_lg_u32 s{S_W}, {w}"); e(f"s_cbranch_scc1 {l}")
            for i,kb in its:
                d=w1x(i); o=(kb-6*cc)*9216+(8-w)*32
                tr(g,d,14,o); tr(g,d+2,14,o+4608)
            e(f"{l}:")
        e("s_waitcnt lgkmcnt(0)")
    g.vwait(c5); bar(); consume_w1(HA,0); bar()
    c7=chunk_w1(HA,2)
    g.vwait(c6); bar(); consume_w1(HB,1); bar()
    e("v_cmp_gt_u32 s[24:25], 7, v1")
    e(f"s_lshl_b32 s21, s{S_W}, 5"); e(f"s_add_u32 s21, s21, s{S_R}")
    e("s_lshl_b32 s20, s21, 7"); e(f"s_add_u32 s20, s20, {WS_ML}")
    e(f"v_mov_b32 v17, {OOB}"); e("v_cndmask_b32 v16, v17, v237, s[24:25]")
    l=g.label(); e(f"s_cmp_gt_u32 s{S_W}, 1"); e(f"s_cbranch_scc1 {l}")
    g.vissue("buffer_load_dwordx4 v[20:23], v16, s[4:7], s20 offen sc1", False)
    e(f"{l}:")
    mt=g.vm
    c9=chunk_1152(HB,S_W2,4608*1152,144,64)
    g.vwait(mt); bar(); consume_w1(HA,2); bar()
    e(f"s_lshl_b32 s88, s{S_R}, 14"); e(f"s_lshl_b32 s89, s{S_W}, 11"); e("s_add_u32 s88, s88, s89"); e(f"s_add_u32 s89, s88, {WS_E3}"); e(f"s_add_u32 s88, s88, {WS_E2A}")
    if cfg.get('pretouch',1):
        g.vissue("buffer_load_dwordx4 v[60:63], v236, s[4:7], s84 offen sc1"); g.vissue("buffer_load_dwordx4 v[60:63], v236, s[4:7], s85 offen sc1")
    e(f"s_cmp_gt_u32 s{S_R}, {17 if cfg.get('defer',1) else 99}"); e("s_cbranch_scc1 L_noc10")
    if cfg.get('pretouch',1):
        for sr in (88,89):
            for o in (0,1024): g.vissue(f"buffer_load_dwordx4 v[60:63], v237, s[4:7], s{sr} offen offset:{o} sc1", False)
    vm0=g.vm
    chunk_1152(HA,S_W2,4608*1152,144,0)
    g.vm=vm0
    e("L_noc10:")
    g.stamp(4)
    lE=g.label("MLskip"); e(f"s_cmp_gt_u32 s{S_W}, 1"); e(f"s_cbranch_scc1 {lE}")
    e("s_mov_b32 s16, s21")
    e(f"v_cmp_ne_u32 vcc, s{S_TAG}, v21"); e(f"v_cmp_ne_u32 s[22:23], s{S_TAG}, v23"); e("s_or_b64 vcc, vcc, s[22:23]"); e("s_and_b64 vcc, vcc, s[24:25]")
    e("s_cbranch_vccz L_mlok")
    poll(["buffer_load_dwordx4 v[20:23], v16, s[4:7], s20 offen sc1"], [21,23], "s[24:25]", sleep=4, name="ML")
    e("L_mlok:")
    e("v_mov_b32 v17, 0xff800000"); e("v_cndmask_b32 v20, v17, v20, s[24:25]")
    e("v_mov_b32 v24, v20")
    for m in ("quad_perm:[1,0,3,2]","quad_perm:[2,3,0,1]","row_half_mirror"):
        e(f"v_max_f32_dpp v24, v24, v24 {m} {DPP}")
    e("v_sub_f32 v20, v20, v24"); e("v_mul_f32 v20, s30, v20"); e("v_exp_f32 v20, v20")
    e("v_mul_f32 v24, v20, v22"); e("v_cndmask_b32 v24, 0, v24, s[24:25]")
    for m in ("quad_perm:[1,0,3,2]","quad_perm:[2,3,0,1]","row_half_mirror"):
        e(f"v_add_f32_dpp v24, v24, v24 {m} {DPP}")
    e("v_rcp_f32 v24, v24"); e("v_mul_f32 v20, v20, v24")
    for j in range(7): e(f"v_readlane_b32 s{76+j}, v20, {j}")
    g.stamp(5)
    e("s_lshl_b32 s16, s16, 13"); e(f"s_add_u32 s16, s16, {WS_E1}"); e("s_add_u32 s17, s16, 4096")
    e("s_mov_b32 s20, 0x7f"); e(f"s_mov_b32 s{S_CNT}, 0")
    e("L_e1:")
    for j in range(7):
        l=g.label(); e(f"s_bitcmp0_b32 s20, {j}"); e(f"s_cbranch_scc1 {l}")
        g.vissue(f"buffer_load_dwordx4 v[{16+4*j}:{19+4*j}], v237, s[4:7], s{16 if j<4 else 17} offen offset:{(j%4)*1024} sc1", False)
        e(f"{l}:")
    e("s_waitcnt vmcnt(0)")
    for j in range(7):
        e(f"v_cmp_ne_u32 vcc, s{S_TAG}, v{17+4*j}"); e(f"v_cmp_ne_u32 s[22:23], s{S_TAG}, v{19+4*j}"); e("s_or_b64 vcc, vcc, s[22:23]")
        e("s_cmp_eq_u64 vcc, 0"); e(f"s_cselect_b32 s21, {0xffffffff ^ (1<<j)}, -1"); e("s_and_b32 s20, s20, s21")
    e("s_cmp_eq_u32 s20, 0"); e("s_cbranch_scc1 L_e1d")
    if cfg.get('e1sleep',1): e(f"s_sleep {cfg.get('e1sleep',1)}")
    e(f"s_add_u32 s{S_CNT}, s{S_CNT}, 1"); e(f"s_cmp_lt_u32 s{S_CNT}, {POLL_MAX}"); e("s_cbranch_scc1 L_e1")
    e("L_e1d:")
    g.stamp(6)
    e(f"{lE}:")
    e("L_chain:")
    lE=g.label("Oskip"); e(f"s_cmp_gt_u32 s{S_W}, 1"); e(f"s_cbranch_scc1 {lE}")
    e("v_mul_f32 v44, s76, v16"); e("v_mul_f32 v45, s76, v18")
    for j in range(1,7):
        e(f"v_fmac_f32 v44, s{76+j}, v{16+4*j}"); e(f"v_fmac_f32 v45, s{76+j}, v{18+4*j}")
    e(f"s_lshl_b32 s16, s{S_W}, 7"); e("v_add_u32 v46, s16, v10")
    e("v_cvt_pk_bf16_f32 v44, v44, v45")
    e(f"ds_write_b32 v46, v44 offset:{OB}")
    e("s_waitcnt lgkmcnt(0)")
    e(f"{lE}:")
    bar()
    def pub_store(txt):
        a=g.label(); b=g.label()
        e(f"s_cmp_eq_u32 s{S_FAST}, 0"); e(f"s_cbranch_scc1 {a}")
        g.vissue(txt, False); e(f"s_branch {b}")
        e(f"{a}:"); g.vissue(txt+" sc1", False); e(f"{b}:")
    def store_tile(i, area):
        d=40+4*i
        e(f"s_add_u32 s16, s31, {area+i*65536}")
        e(f"v_mov_b32 v{d+1}, s{S_TAG}"); e(f"v_mov_b32 v{d+3}, s{S_TAG}")
        pub_store(f"buffer_store_dwordx4 v[{d}:{d+3}], v11, s[4:7], s16 offen")
    def gemv_out(abuf, wreg, area, extra=None):
        for kb in range(4): e(f"ds_read_b128 v[{16+4*kb}:{19+4*kb}], v9 offset:{abuf+kb*64}")
        if extra: extra[0]()
        ls=g.label()
        for i in range(5):
            if i==4: e(f"s_cmp_gt_u32 s{S_W}, 3"); e(f"s_cbranch_scc1 {ls}")
            d=40+4*i
            for kb in range(4):
                if i==0: e(f"s_waitcnt lgkmcnt({3-kb+(4 if extra else 0)})")
                e(f"v_mfma_f32_16x16x32_bf16 v[{d}:{d+3}], v[{16+4*kb}:{19+4*kb}], v[{wreg+16*i+4*kb}:{wreg+16*i+4*kb+3}], {'0' if kb==0 else f'v[{d}:{d+3}]'}")
            if extra and i==0: e("s_waitcnt lgkmcnt(0)"); extra[1]()
            if not extra and i>=1: store_tile(i-1, area)
        if not extra: store_tile(4, area); e(f"s_branch {ls}x")
        e(f"{ls}:")
        if not extra: store_tile(3, area); e(f"{ls}x:")
        if extra:
            ls=g.label()
            for i in range(5):
                if i==4: e(f"s_cmp_gt_u32 s{S_W}, 3"); e(f"s_cbranch_scc1 {ls}")
                d=40+4*i
                e(f"v_mfma_f32_16x16x16_bf16 v[{d}:{d+3}], v[60:61], v[{W2H+2*i}:{W2H+2*i+1}], v[{d}:{d+3}]")
            store_tile(4, area)
            e(f"{ls}:")
            for i in range(4): store_tile(i, area)
    gemv_out(OB, WO, WS_E2A)
    g.stamp(7)
    if cfg.get('defer',1):
        l=g.label(); e(f"s_cmp_lt_u32 s{S_R}, 18"); e(f"s_cbranch_scc1 {l}")
        chunk_1152(HA,S_W2,4608*1152,144,0)
        e(f"{l}:")
    def gather_reduce(sreg, name):
        poll([f"buffer_load_dwordx4 v[16:19], v237, s[4:7], {sreg} offen sc1",
              f"buffer_load_dwordx4 v[20:23], v237, s[4:7], {sreg} offen offset:1024 sc1"], [17,19,21,23], name=name, dry=True)
        e("v_add_f32 v16, v16, v20"); e("v_add_f32 v18, v18, v22")
        e("v_permlane32_swap_b32 v16, v18"); e("v_add_f32 v16, v16, v18")
        e("v_mov_b32 v18, v16"); e("v_permlane16_swap_b32 v16, v18"); e("v_add_f32 v16, v16, v18")
        e(f"v_add_f32_dpp v16, v16, v16 row_ror:4 {DPP}"); e(f"v_add_f32_dpp v16, v16, v16 row_ror:8 {DPP}")
        g.r1(16)
    l=g.label(); e(f"s_cmp_gt_u32 s{S_R}, 17"); e(f"s_cbranch_scc1 {l}")
    e(f"v_mov_b32 v25, s{S_TAG}")
    gather_reduce("s88","E2A")
    e("v_mul_f32 v16, v248, v16"); g.r1(16)
    e("v_add_f32 v24, v230, v16"); g.r1(24)
    pub_store(f"buffer_store_dwordx2 v[24:25], v250, s[4:7], s84 offen")
    e(f"v_mov_b32 v{X1R}, v24")
    e(f"{l}:")
    g.stamp(8)
    e("s_waitcnt vmcnt(0)"); bar()
    consume_1152(HB,1,WO)
    consume_1152(HA,0,WO)
    e("v_lshrrev_b32 v24, 5, v1"); e("v_mul_u32_u24 v24, 4608, v24")
    l=g.label(); e(f"s_cmp_gt_u32 s{S_W}, 4"); e(f"s_cbranch_scc1 {l}")
    poll(["buffer_load_dwordx4 v[40:43], v236, s[4:7], s84 offen sc1",
          "buffer_load_dwordx4 v[20:23], v236, s[4:7], s85 offen sc1",
          "buffer_load_dwordx2 v[44:45], v24, s[4:7], s84 offen sc1"], [41,43,21,23], "s[28:29]", name="E2B", extra_tag=45, dry=True)
    e(f"{l}:")
    g.stamp(9)
    e("v_mov_b32 v41, v42"); e("v_mov_b32 v42, v20"); e("v_mov_b32 v43, v22")
    ln_part1(); e("s_waitcnt lgkmcnt(0)"); bar(); ln_part2()
    modulate(240,244)
    e("s_waitcnt lgkmcnt(0)"); bar()
    g.stamp(10)
    lend=g.label("W1e")
    def w1_body(w):
        xs={ (w-4)+4*i:i for i in range(5) if (w-4)+4*i<18 } if w is not None else {}
        first=[True]
        def mm(k):
            a=16+4*(k%6)
            e(f"v_mfma_f32_16x16x32_bf16 v[60:63], v[{a}:{a+3}], v[{W1+4*k}:{W1+4*k+3}], {'0' if k==0 else 'v[60:63]'}")
            if k in xs:
                d=w1x(xs[k])
                e(f"v_mfma_f32_16x16x32_bf16 v[56:59], v[{a}:{a+3}], v[{d}:{d+3}], {'0' if first[0] else 'v[56:59]'}"); first[0]=False
        for kb in range(18):
            as_=16+4*(kb%6)
            e(f"ds_read_b128 v[{as_}:{as_+3}], v8 offset:{HBUF+kb*64}")
            if kb>=4: e("s_waitcnt lgkmcnt(4)"); mm(kb-4)
        for k in range(14,18): e(f"s_waitcnt lgkmcnt({17-k})"); mm(k)
        if w is not None:
            e("v_cndmask_b32 v56, v58, v56, s[86:87]")
            e(f"ds_write_b32 v233, v56 offset:{W1XP+(w-4)*128}")
    for w in range(4,8):
        l=g.label(); e(f"s_cmp_lg_u32 s{S_W}, {w}"); e(f"s_cbranch_scc1 {l}")
        w1_body(w); e(f"s_branch {lend}"); e(f"{l}:")
    w1_body(None)
    e(f"{lend}:")
    e("v_cndmask_b32 v60, v62, v60, s[86:87]")
    g.r1(60); e("v_add_f32 v60, v60, v232"); g.r1(60); e("v_max_f32 v60, 0, v60"); e("v_mul_f32 v60, v60, v60")
    e("v_cvt_pk_bf16_f32 v60, v60, v60")
    e(f"ds_write_b16 v252, v60 offset:{HIDB}")
    e("s_waitcnt lgkmcnt(0)"); bar()
    g.stamp(11)
    def ex0():
        for p in range(4): e(f"ds_read_b128 v[{W1+4*p}:{W1+4*p+3}], v253 offset:{W1XP+p*128}")
    def ex1():
        t=W1
        for k in range(4): e(f"v_add_f32 v{t+k}, v{t+k}, v{t+4+k}"); e(f"v_add_f32 v{t+8+k}, v{t+8+k}, v{t+12+k}")
        for k in range(4): e(f"v_add_f32 v{t+k}, v{t+k}, v{t+8+k}")
        g.r2(t,t+1,t+4); g.r2(t+2,t+3,t+5)
        e(f"v_lshlrev_b32 v{t+4}, 16, v234"); e(f"v_and_b32 v{t+5}, 0xffff0000, v234"); e(f"v_lshlrev_b32 v{t+6}, 16, v235"); e(f"v_and_b32 v{t+7}, 0xffff0000, v235")
        for k in range(4): e(f"v_add_f32 v{t+k}, v{t+k}, v{t+4+k}")
        g.r2(t,t+1,t+4); g.r2(t+2,t+3,t+5)
        for k in range(4): e(f"v_max_f32 v{t+k}, 0, v{t+k}"); e(f"v_mul_f32 v{t+k}, v{t+k}, v{t+k}")
        e(f"v_cvt_pk_bf16_f32 v60, v{t}, v{t+1}"); e(f"v_cvt_pk_bf16_f32 v61, v{t+2}, v{t+3}")
    gemv_out(HIDB, WO, WS_E3, (ex0,ex1))
    g.stamp(12)
    e(f"s_cmp_gt_u32 s{S_R}, 17"); e("s_cbranch_scc1 L_chain_end")
    g.srd(12,S_OUT,2304); e("s_min_u32 s14, s14, s6")
    gather_reduce("s89","E3")
    e("v_add_f32 v16, v16, v231"); g.r1(16)
    e("v_mul_f32 v16, v249, v16"); g.r1(16)
    e(f"v_add_f32 v16, v{X1R}, v16"); e("v_cvt_pk_bf16_f32 v16, v16, v16")
    e("buffer_store_short v16, v251, s[12:15], 0 offen")
    g.stamp(13)
    e(f"s_or_b32 s16, s{S_R}, s{S_W}"); e("s_cmp_lg_u32 s16, 0"); e("s_cbranch_scc1 L_chain_end")
    e(f"v_mov_b32 v17, {OOB}"); e("v_cmp_eq_u32 vcc, 0, v1"); e("v_cndmask_b32 v17, v17, 0, vcc"); e(f"v_mov_b32 v18, s{S_TAG}")
    e(f"buffer_store_dword v18, v17, s[4:7], 0 offen offset:{WS_EPOCH} sc1")
    if cfg.get('dbgtime'):
        g.srd(12,S_DBG,256); e("s_min_u32 s14, s14, s6")
        for k,sr in enumerate((96,97,98)):
            e(f"s_sub_u32 s70, s{sr}, s99"); e("v_mov_b32 v18, s70"); e(f"buffer_store_dword v18, v17, s[12:15], 0 offen offset:{4*k}")
    e("L_chain_end:")
    if cfg.get('dry',0):
        e(f"s_cmp_lg_u32 s{S_DRY}, 0"); e("s_cbranch_scc1 L_after_dry")

def build(cfg):
    g=G(cfg)
    prologue(g); stream(g); tail(g)
    g.e("L_end:"); g.e("s_endpgm"); g.e("L_code_end:")
    body,n=fix_hazards(g.L)
    H=[f"; @launch grid=(256,1,1) block=(512,1,1) lds={LDS_BYTES}",
       '.amdgcn_target "amdgcn-amd-amdhsa--gfx950"', ".text", f".globl {KN}_kernel", ".p2align 8", f".type {KN}_kernel,@function", f"{KN}_kernel:"]
    T=['.section .rodata,"a"', ".p2align 6", f".amdhsa_kernel {KN}_kernel", "  .amdhsa_next_free_vgpr 256", "  .amdhsa_next_free_sgpr 102",
       "  .amdhsa_accum_offset 256", "  .amdhsa_group_segment_fixed_size 0", "  .amdhsa_kernarg_size 120", "  .amdhsa_user_sgpr_count 2",
       "  .amdhsa_user_sgpr_kernarg_segment_ptr 1", "  .amdhsa_system_sgpr_workgroup_id_x 1", ".end_amdhsa_kernel"]
    return "\n".join(H+body+T)+"\n", n
if __name__=="__main__":
    import json
    out=sys.argv[1]; cfg=json.loads(sys.argv[2]) if len(sys.argv)>2 else {}
    s,n=build(cfg); open(out,"w").write(s); print(out,"nops inserted",n,"lines",s.count("\n"))
```
